```python
import torch

def _softmax(x, axis=-1):
    return torch.softmax(x, dim=axis)
def _gelu(x):
    return torch.nn.functional.gelu(x, approximate="tanh")
def _silu(x):
    return torch.nn.functional.silu(x)
def _sigmoid(x):
    return torch.sigmoid(x)
def _layernorm(x, axis=-1, eps=1e-5):
    m = x.mean(dim=axis, keepdim=True)
    v = x.var(dim=axis, keepdim=True, unbiased=False)
    return (x - m) / torch.sqrt(v + eps)
def _scatter_add(tgt, idx, src, axis=0):
    return tgt.clone().index_add_(axis, idx, src)
def _segment_sum(src, seg, n):
    out = torch.zeros((n,) + src.shape[1:], dtype=src.dtype)
    return out.index_add_(0, seg, src)
def _pad(x, pw):
    flat = tuple(v for pair in reversed(pw) for v in pair)
    return torch.nn.functional.pad(x, flat)

kernel_name = 'gated_mix__spectral_gfnet__mha_block__prompt'

def setup_inputs():

    _w = (lambda a: (lambda t: t.to(torch.bfloat16) if t.is_floating_point() else t)(torch.as_tensor(a)))
    def _A_setup():
        B, S, D = 1, 2048, 448
        Df = D // 2 + 1
        return {
            "x": _w((lambda *s: torch.randn(*s, dtype=torch.bfloat16) * 0.05)(B, S, D)),
            "w_r": _w((lambda *s: torch.randn(*s, dtype=torch.bfloat16) * 6.4)(S, Df) * 0.02),
            "w_i": _w((lambda *s: torch.randn(*s, dtype=torch.bfloat16) * 6.4)(S, Df) * 0.02),
        }
    _A_in = _A_setup()

    def _B_setup():
        B, S, D, H = 1, 2048, 448, 16
        return {
            "x": _w((lambda *s: torch.randn(*s, dtype=torch.bfloat16) * 0.05)(B, S, D)),
            "wqkv": _w((lambda *s: torch.randn(*s, dtype=torch.bfloat16) * 0.8)(D, 3 * D)),
            "wo": _w((lambda *s: torch.randn(*s, dtype=torch.bfloat16) * 0.05)(D, D)),
        }
    _B_in = _B_setup()

    return {
        "A_x": _A_in["x"],
        "A_w_r": _A_in["w_r"],
        "A_w_i": _A_in["w_i"],
        "B_x": _B_in["x"],
        "B_wqkv": _B_in["wqkv"],
        "B_wo": _B_in["wo"],
        "gate_w": _w((lambda *s: torch.randn(*s, dtype=torch.bfloat16) * 0.05)(448) * 16.0),
    }

def reference(A_x, A_w_r, A_w_i, B_x, B_wqkv, B_wo, gate_w):
    def _A_ref(x, w_r, w_i):
        B, S, D = x.shape
        X = (lambda x, axes=(-2,-1): torch.fft.rfft2(x.float(), dim=axes))(x, axes=(-2, -1))
        W = w_r + 1j * w_i
        X = X * W
        y = (lambda x, s, axes=(-2,-1): torch.fft.irfft2(x, s=s, dim=axes).to(torch.bfloat16))(X, (S, D), axes=(-2, -1))
        return y

    def _B_ref(x, wqkv, wo):
        B, S, D = x.shape
        H = 16
        Dh = D // H
        qkv = (lambda x, *d: x.permute(*d))((x @ wqkv).reshape(B, S, 3, H, Dh), 2, 0, 3, 1, 4)
        q, k, v = qkv[0], qkv[1], qkv[2]
        scores = torch.einsum("bhqd,bhkd->bhqk", q, k) * (Dh ** -0.5)
        p = _softmax(scores, axis=-1)
        o = torch.einsum("bhqk,bhkd->bhqd", p, v)
        return (lambda x, *d: x.permute(*d))(o, 0, 2, 1, 3).reshape(B, S, D) @ wo

    x = A_x
    g = _sigmoid((x * gate_w).sum(-1, keepdims=True))
    a = _A_ref(x, A_w_r, A_w_i)
    b = _B_ref(x, B_wqkv, B_wo)
    return g * a + (1 - g) * b
```

```python
class Asm:
    uid = 0
    def __init__(self):
        self.lines = []
        self.vm = []
        self.lg = []
    def __call__(self, s):
        for l in s.strip("\n").split("\n"):
            l = l.strip()
            if l:
                self.lines.append(("" if l.endswith(":") else "    ") + l)
    def label(self, name):
        self.lines.append(name + ":")
    def comment(self, s):
        self.lines.append("    ; " + s)
    def newlabel(self, base):
        Asm.uid += 1
        return f"L_{base}_{Asm.uid}"
    def vmem(self, s, tag):
        self(s); self.vm.append(tag)
    def lds(self, s, tag):
        self(s); self.lg.append(tag)
    def wait_vm(self, tags, extra=""):
        if isinstance(tags, str): tags = [tags]
        idx = -1
        for i, t in enumerate(self.vm):
            if t in tags: idx = i
        if idx < 0:
            if extra: self(f"s_waitcnt {extra}")
            return
        n = len(self.vm) - 1 - idx
        assert n <= 63, n
        self(f"s_waitcnt vmcnt({n}) {extra}".strip())
        self.vm = self.vm[idx+1:]
    def wait_lg(self, tags):
        if isinstance(tags, str): tags = [tags]
        idx = -1
        for i, t in enumerate(self.lg):
            if t in tags: idx = i
        if idx < 0: return
        n = len(self.lg) - 1 - idx
        n = min(n, 15)
        self(f"s_waitcnt lgkmcnt({n})")
        self.lg = self.lg[len(self.lg)-n:] if n else []
    def wait_all(self):
        self("s_waitcnt vmcnt(0) lgkmcnt(0)")
        self.vm = []; self.lg = []
    def snapshot(self):
        return (list(self.vm), list(self.lg))
    def restore(self, snap):
        self.vm = list(snap[0]); self.lg = list(snap[1])
    def text(self):
        return "\n".join(self.lines) + "\n"

def vr(base, n=1):
    return f"v{base}" if n == 1 else f"v[{base}:{base+n-1}]"
def sr(base, n=1):
    return f"s{base}" if n == 1 else f"s[{base}:{base+n-1}]"

def srd(a, d, lo, hi, nbytes):
    a(f"""
    s_mov_b32 s{d}, {lo}
    s_and_b32 s{d+1}, {hi}, 0xffff
    s_mov_b32 s{d+2}, {nbytes}
    s_mov_b32 s{d+3}, 0x20000
    """)

def kdesc(name, vgpr, sgpr, accum=None):
    if accum is None: accum = (vgpr + 3) // 4 * 4
    return f"""
.p2align 6
.amdhsa_kernel {name}
  .amdhsa_next_free_vgpr {vgpr}
  .amdhsa_next_free_sgpr {sgpr}
  .amdhsa_accum_offset {accum}
  .amdhsa_group_segment_fixed_size 0
  .amdhsa_kernarg_size 80
  .amdhsa_user_sgpr_count 2
  .amdhsa_user_sgpr_kernarg_segment_ptr 1
  .amdhsa_system_sgpr_workgroup_id_x 1
.end_amdhsa_kernel
"""
def khead(name):
    return f"""
.globl {name}
.p2align 8
.type {name},@function
{name}:
"""
```

```python
from asmlib import *
from layout import *
import math

SLOT = 31744
NSLOT = 5
K1_LDS = SLOT * NSLOT
QSCALE = (28 ** -0.5) * math.log2(math.e)
import struct
def f2u(f): return struct.unpack("<I", struct.pack("<f", f))[0]

def gen_k1():
    a = Asm()
    name = "k1_kernel"
    a.lines.append(khead(name))
    X, BS, WS, WR, WI = 4, 8, 12, 16, 20
    sMT, sTY, sHG, sW, sMQ, sNH = 34, 35, 36, 37, 38, 39
    sT0, sT1, sT2, sT3 = 40, 41, 42, 43
    sBROW = 44
    sASO, sBSO = 45, 46
    sM0A, sM0B = 47, 48
    sEXEC = 50
    sMASK56 = 52
    sBCH = 54
    sB4 = 55
    sOB = 56
    sSC = 57
    vLANE = 1
    vAO0, vAO1, vBO = 2, 3, 4
    vLA = [[5, 6], [7, 8], [9, 10]]
    vLB = [11, 12, 13]
    vT0, vT1, vT2, vT3 = 14, 15, 16, 17
    vWT = 20
    vWKO, vWSO = 18, 19
    vZ = 24
    vEO = 28
    ACC = 32
    AF = 64
    BF = 80
    vPK = 112
    NV = 116

    a(f"""
    s_cmp_ge_u32 s2, 256
    s_cbranch_scc1 L_k1_end
    s_load_dwordx4 s[24:27], s[0:1], 0
    s_load_dwordx2 s[28:29], s[0:1], 16
    s_load_dwordx2 s[30:31], s[0:1], 32
    s_load_dwordx2 s[32:33], s[0:1], 72
    s_getpc_b64 s[58:59]
    s_add_u32 s58, s58, tbl_fd@rel32@lo+4
    s_addc_u32 s59, s59, tbl_fd@rel32@hi+12
    v_and_b32 v{vLANE}, 63, v0
    v_lshrrev_b32 v{vT0}, 6, v0
    s_and_b32 s{sT0}, s2, 7
    s_lshr_b32 s{sT1}, s2, 3
    v_readfirstlane_b32 s{sW}, v{vT0}
    s_lshr_b32 s{sHG}, s{sT0}, 1
    s_and_b32 s{sT2}, s{sT0}, 1
    s_lshl_b32 s{sT2}, s{sT2}, 3
    s_and_b32 s{sMT}, s{sT1}, 7
    s_add_u32 s{sMT}, s{sMT}, s{sT2}
    s_lshr_b32 s{sTY}, s{sT1}, 3
    s_and_b32 s{sMQ}, s{sW}, 3
    s_lshr_b32 s{sNH}, s{sW}, 2
    """)
    a(f"""
    s_lshl_b32 s{sT2}, s{sT0}, 5
    s_add_u32 s{sT2}, s{sT2}, s{sT1}
    s_lshl_b32 s{sT2}, s{sT2}, 3
    s_lshl_b32 s{sT3}, s{sNH}, 2
    s_add_u32 s{sT2}, s{sT2}, s{sT3}
    s_mul_i32 s{sT3}, s{sT2}, 450
    v_and_b32 v{vT0}, 255, v0
    v_lshlrev_b32 v{vWKO}, 1, v{vT0}
    v_lshlrev_b32 v{vWSO}, 13, v{vT0}
    s_lshl_b32 s{sT2}, s{sT2}, 2
    s_add_u32 s{sT2}, s{sT2}, {WF}
    v_add_u32 v{vWSO}, s{sT2}, v{vWSO}
    v_mov_b32 v{vT1}, 0x7fffffff
    v_cmp_gt_u32 vcc, 225, v{vT0}
    s_nop 1
    v_cndmask_b32 v{vWSO}, v{vT1}, v{vWSO}, vcc
    """)
    a(f"""
    v_lshrrev_b32 v{vT0}, 3, v{vLANE}
    v_and_b32 v{vT1}, 7, v{vLANE}
    v_xor_b32 v{vT1}, v{vT1}, v{vT0}
    v_lshlrev_b32 v{vT1}, 4, v{vT1}
    s_lshl_b32 s{sT2}, s{sW}, 4
    v_add_u32 v{vT0}, s{sT2}, v{vT0}
    s_lshl_b32 s{sT2}, s{sMT}, 2
    s_cmp_eq_u32 s{sTY}, 3
    s_cbranch_scc1 L_k1_dftrows
    """)
    for ii, dst in ((0, vAO0), (1, vAO1)):
        a(f"""
        v_add_u32 v{vT2}, {8*ii}, v{vT0}
        v_and_b32 v{vT3}, 31, v{vT2}
        v_lshlrev_b32 v{vT3}, 6, v{vT3}
        v_lshrrev_b32 v{vT2}, 5, v{vT2}
        v_add3_u32 v{vT2}, v{vT2}, v{vT3}, s{sT2}
        v_mul_u32_u24 v{vT2}, 896, v{vT2}
        v_add_u32 v{dst}, v{vT2}, v{vT1}
        """)
    a("s_branch L_k1_rowsdone")
    a.label("L_k1_dftrows")
    for ii, dst in ((0, vAO0), (1, vAO1)):
        a(f"""
        v_add_u32 v{vT2}, {8*ii}, v{vT0}
        v_lshrrev_b32 v{vT3}, 4, v{vT2}
        v_lshlrev_b32 v{vT3}, 2, v{vT3}
        v_and_b32 v{dst}, 3, v{vT2}
        v_add_u32 v{vT3}, v{vT3}, v{dst}
        v_lshlrev_b32 v{vT3}, 6, v{vT3}
        v_bfe_u32 v{vT2}, v{vT2}, 2, 2
        v_add3_u32 v{vT2}, v{vT2}, v{vT3}, s{sT2}
        v_mul_u32_u24 v{vT2}, 896, v{vT2}
        v_add_u32 v{dst}, v{vT2}, v{vT1}
        """)
    a.label("L_k1_rowsdone")
    a("s_waitcnt lgkmcnt(0)")
    srd(a, X, "s24", "s25", 2048*896)
    srd(a, WR, "s26", "s27", 2048*450)
    srd(a, WI, "s28", "s29", 2048*450)
    srd(a, WS, "s32", "s33", WS_USED)
    a(f"""
    s_mov_b32 s{BS+2}, {448*2688}
    s_mov_b32 s{sBROW}, 2688
    s_cmp_eq_u32 s{sTY}, 3
    s_cselect_b32 s{BS}, s58, s30
    s_cselect_b32 s{BS+1}, s59, s31
    s_cselect_b32 s{BS+2}, {448*896}, s{BS+2}
    s_mov_b32 s{BS+3}, 0x20000
    s_cselect_b32 s{sBROW}, 896, s{sBROW}
    s_cselect_b32 s{sT2}, 0, s{sTY}
    s_and_b32 s{BS+1}, s{BS+1}, 0xffff
    s_lshl_b32 s{sT2}, s{sT2}, 2
    s_add_u32 s{sT2}, s{sT2}, s{sHG}
    s_mul_i32 s{sT2}, s{sT2}, 224
    """)
    for i in range(4):
        a.vmem(f"buffer_load_ushort v{vWT+i}, v{vWKO}, s[{WR}:{WR+3}], s{sT3} offen offset:{450*i}", "wt")
        a.vmem(f"buffer_load_ushort v{vPK+i}, v{vWKO}, s[{WI}:{WI+3}], s{sT3} offen offset:{450*i}", "wt")
    a(f"""
    v_mul_u32_u24 v{vT0}, 4682, v{vLANE}
    v_lshrrev_b32 v{vT0}, 16, v{vT0}
    v_mul_u32_u24 v{vT1}, 14, v{vT0}
    v_sub_u32 v{vT1}, v{vLANE}, v{vT1}
    v_lshlrev_b32 v{vT1}, 4, v{vT1}
    s_lshl_b32 s{sT3}, s{sW}, 3
    v_add_u32 v{vT0}, s{sT3}, v{vT0}
    v_mul_lo_u32 v{vT0}, v{vT0}, s{sBROW}
    v_add3_u32 v{vBO}, v{vT0}, v{vT1}, s{sT2}
    v_cmp_gt_u32 vcc, 56, v{vLANE}
    s_mov_b64 s[{sMASK56}:{sMASK56+1}], vcc
    s_lshl_b32 s{sBCH}, s{sBROW}, 6
    s_lshl_b32 s{sB4}, s{sBROW}, 2
    s_lshl_b32 s{sM0A}, s{sW}, 11
    s_mul_i32 s{sM0B}, s{sW}, 1920
    s_add_u32 s{sM0B}, s{sM0B}, 16384
    s_mov_b32 s{sASO}, 0
    s_mov_b32 s{sBSO}, 0
    """)
    def dma_chunk(c):
        slot = (c % NSLOT) * SLOT
        tag = f"c{c}"
        a(f"s_add_u32 m0, s{sM0A}, {slot}")
        a("s_nop 0")
        a.vmem(f"buffer_load_dwordx4 v{vAO0}, s[{X}:{X+3}], s{sASO} offen lds", tag)
        a(f"s_add_u32 m0, s{sM0A}, {slot+1024}")
        a("s_nop 0")
        a.vmem(f"buffer_load_dwordx4 v{vAO1}, s[{X}:{X+3}], s{sASO} offen lds", tag)
        a(f"s_mov_b64 exec, s[{sMASK56}:{sMASK56+1}]")
        a(f"s_add_u32 m0, s{sM0B}, {slot}")
        a(f"s_add_u32 s{sT3}, s{sBSO}, s{sB4}")
        a.vmem(f"buffer_load_dwordx4 v{vBO}, s[{BS}:{BS+3}], s{sBSO} offen lds", tag)
        a(f"s_add_u32 m0, s{sM0B}, {slot+896}")
        a(f"s_add_u32 s{sASO}, s{sASO}, 128")
        a.vmem(f"buffer_load_dwordx4 v{vBO}, s[{BS}:{BS+3}], s{sT3} offen lds", tag)
        a(f"s_mov_b64 exec, -1")
        a(f"s_add_u32 s{sBSO}, s{sBSO}, s{sBCH}")
    for c in range(NSLOT):
        dma_chunk(c)
    a(f"""
    v_and_b32 v{vT0}, 15, v{vLANE}
    v_lshrrev_b32 v{vT1}, 4, v{vLANE}
    v_and_b32 v{vT2}, 7, v{vT0}
    v_xor_b32 v{vT2}, v{vT2}, v{vT1}
    v_lshlrev_b32 v{vT2}, 4, v{vT2}
    v_lshl_add_u32 v{vT2}, v{vT0}, 7, v{vT2}
    s_lshl_b32 s{sT3}, s{sMQ}, 12
    v_add_u32 v{vLA[0][0]}, s{sT3}, v{vT2}
    v_xor_b32 v{vLA[0][1]}, 64, v{vLA[0][0]}
    v_add_u32 v{vLA[1][0]}, {2*SLOT}, v{vLA[0][0]}
    v_add_u32 v{vLA[1][1]}, {2*SLOT}, v{vLA[0][1]}
    v_add_u32 v{vLA[2][0]}, {4*SLOT}, v{vLA[0][0]}
    v_add_u32 v{vLA[2][1]}, {4*SLOT}, v{vLA[0][1]}
    """)
    a(f"""
    v_mul_u32_u24 v{vT2}, 1920, v{vT1}
    v_lshrrev_b32 v{vT3}, 2, v{vT0}
    v_mul_u32_u24 v{vT3}, 224, v{vT3}
    v_add_u32 v{vT2}, v{vT2}, v{vT3}
    v_and_b32 v{vT3}, 3, v{vLANE}
    v_lshl_add_u32 v{vT2}, v{vT3}, 3, v{vT2}
    s_lshl_b32 s{sT3}, s{sNH}, 7
    v_add_u32 v{vLB[0]}, s{sT3}, v{vT2}
    v_add_u32 v{vLB[1]}, {2*SLOT}, v{vLB[0]}
    v_add_u32 v{vLB[2]}, {4*SLOT}, v{vLB[0]}
    """)
    for i in range(32):
        a(f"v_mov_b32 v{ACC+i}, 0")
    a(f"""
    s_cmp_eq_u32 s{sTY}, 3
    s_cbranch_scc1 L_k1_padnone
    s_cmp_eq_u32 s{sTY}, 2
    s_cbranch_scc1 L_k1_padv
    """)
    a(f"""
    v_lshrrev_b32 v{vT2}, 7, v0
    s_lshl_b32 s{sT3}, s{sHG}, 2
    v_add_u32 v{vT2}, s{sT3}, v{vT2}
    v_lshlrev_b32 v{vT2}, 6, v{vT2}
    v_bfe_u32 v{vT3}, v0, 5, 2
    s_lshl_b32 s{sT3}, s{sMT}, 2
    v_add3_u32 v{vT2}, v{vT2}, v{vT3}, s{sT3}
    s_add_u32 s{sT3}, s{sTY}, 11
    v_lshlrev_b32 v{vT2}, s{sT3}, v{vT2}
    v_and_b32 v{vT3}, 31, v0
    v_lshl_add_u32 v{vT2}, v{vT3}, 4, v{vT2}
    s_mul_i32 s{sT3}, s{sTY}, {KV}
    s_add_u32 s{sT3}, s{sT3}, {1024+512+8}
    v_mov_b32 v{vZ}, 0
    v_mov_b32 v{vZ+1}, 0
    """)
    snap = a.snapshot()
    a.vmem(f"buffer_store_dwordx2 v[{vZ}:{vZ+1}], v{vT2}, s[{WS}:{WS+3}], s{sT3} offen", "pad")
    a("s_branch L_k1_paddone")
    a.label("L_k1_padv")
    a.restore(snap)
    a(f"""
    v_lshrrev_b32 v{vT2}, 4, v{vLANE}
    s_lshl_b32 s{sT3}, s{sHG}, 2
    v_add_u32 v{vT2}, s{sT3}, v{vT2}
    v_lshlrev_b32 v{vT2}, 6, v{vT2}
    v_bfe_u32 v{vT3}, v{vLANE}, 2, 2
    s_lshl_b32 s{sT3}, s{sMT}, 2
    v_add3_u32 v{vT2}, v{vT2}, v{vT3}, s{sT3}
    v_lshlrev_b32 v{vT2}, 12, v{vT2}
    v_and_b32 v{vT3}, 3, v{vLANE}
    v_lshl_add_u32 v{vT2}, v{vT3}, 9, v{vT2}
    v_mov_b32 v{vZ}, 0x3f803f80
    v_mov_b32 v{vZ+1}, 0x3f803f80
    v_mov_b32 v{vZ+2}, 0x3f803f80
    v_mov_b32 v{vZ+3}, 0x3f803f80
    v_mov_b32 v{vT3}, 0x7fffffff
    s_cmp_eq_u32 s{sW}, 0
    s_cselect_b64 vcc, -1, 0
    s_nop 1
    v_cndmask_b32 v{vT2}, v{vT3}, v{vT2}, vcc
    s_mov_b32 s{sT3}, {KV + 2048 + 28*16}
    """)
    a.vmem(f"buffer_store_dwordx4 v[{vZ}:{vZ+3}], v{vT2}, s[{WS}:{WS+3}], s{sT3} offen", "pad")
    a("s_branch L_k1_paddone")
    a.label("L_k1_padnone")
    a.restore(snap)
    a(f"""
    v_mov_b32 v{vT2}, 0x7fffffff
    v_mov_b32 v{vZ}, 0
    """)
    a.vmem(f"buffer_store_dword v{vZ}, v{vT2}, s[{WS}:{WS+3}], 0 offen", "pad")
    a.label("L_k1_paddone")
    a.wait_vm("wt")
    for i in range(4):
        a(f"v_lshl_or_b32 v{vWT+i}, v{vPK+i}, 16, v{vWT+i}")
    a.vmem(f"buffer_store_dwordx4 v[{vWT}:{vWT+3}], v{vWSO}, s[{WS}:{WS+3}], 0 offen", "wts")

    a(f"""
    s_cmp_eq_u32 s{sTY}, 2
    s_cbranch_scc1 L_k1_v
    s_cmp_eq_u32 s{sNH}, 1
    s_cbranch_scc1 L_k1_t0n1
    """)
    snap0 = a.snapshot()

    def mainloop(T, nh):
        NT = 4 if nh == 0 else 3
        def reads(t):
            c = t // 2; tt = t % 2; buf = t % 2
            slot = c % NSLOT
            bs = slot // 2; so = (slot % 2) * SLOT
            for i in range(2):
                a.lds(f"ds_read_b128 {vr(AF + buf*8 + i*4, 4)}, v{vLA[bs][tt]} offset:{so + i*2048}", f"r{t}")
            for j in range(NT):
                for rho in range(2):
                    a.lds(f"ds_read_b64_tr_b16 {vr(BF + buf*16 + j*4 + rho*2, 2)}, v{vLB[bs]} offset:{so + 16384 + tt*7680 + rho*896 + j*32}", f"r{t}")
        def mfmas(t, i):
            buf = t % 2
            for j in range(NT):
                d = vr(ACC + (i*4 + j)*4, 4)
                xa = vr(AF + buf*8 + i*4, 4); wb = vr(BF + buf*16 + j*4, 4)
                if T == 0: a(f"v_mfma_f32_16x16x32_bf16 {d}, {wb}, {xa}, {d}")
                else:      a(f"v_mfma_f32_16x16x32_bf16 {d}, {xa}, {wb}, {d}")
        a.wait_vm("c0")
        a("s_barrier")
        reads(0)
        for t in range(14):
            if t % 2 == 1 and t + 1 < 14:
                c = (t + 1) // 2
                a.wait_lg(f"r{t}")
                mfmas(t, 0)
                a.wait_vm(f"c{c}")
                a("s_barrier")
                reads(t + 1)
                if c + 3 < 7 and c >= 2:
                    dma_chunk(c + 3)
                mfmas(t, 1)
            else:
                if t + 1 < 14: reads(t + 1)
                a.wait_lg(f"r{t}")
                mfmas(t, 0)
                mfmas(t, 1)

    def f0_decode(j, nh, fsrc_is_g):
        pass

    def epi_T0(nh):
        NT = 4 if nh == 0 else 3
        lq = a.newlabel("k1dft")
        lend = a.newlabel("k1epiend")
        a(f"""
        v_and_b32 v{vT0}, 15, v{vLANE}
        v_lshrrev_b32 v{vT1}, 4, v{vLANE}
        s_cmp_eq_u32 s{sTY}, 3
        s_cbranch_scc1 {lq}
        """)
        a(f"s_add_u32 s{sT2}, s{sTY}, 17")
        for j in range(NT):
            a(f"""
            v_lshl_add_u32 v{vT2}, v{vT1}, 2, {16*(j+4*nh)}
            v_mul_u32_u24 v{vT3}, 2341, v{vT2}
            v_lshrrev_b32 v{vT3}, 16, v{vT3}
            v_mul_u32_u24 v{vPK}, 28, v{vT3}
            v_sub_u32 v{vT2}, v{vT2}, v{vPK}
            v_lshlrev_b32 v{vT3}, s{sT2}, v{vT3}
            v_lshrrev_b32 v{vPK}, 3, v{vT2}
            v_lshl_add_u32 v{vT3}, v{vPK}, 9, v{vT3}
            v_and_b32 v{vT2}, 4, v{vT2}
            v_lshl_add_u32 v{vT3}, v{vT2}, 1, v{vT3}
            v_lshl_add_u32 v{vEO+j}, v{vT0}, 4, v{vT3}
            """) if 16*(j+4*nh) <= 64 else a(f"""
            v_lshlrev_b32 v{vT2}, 2, v{vT1}
            v_add_u32 v{vT2}, {16*(j+4*nh)}, v{vT2}
            v_mul_u32_u24 v{vT3}, 2341, v{vT2}
            v_lshrrev_b32 v{vT3}, 16, v{vT3}
            v_mul_u32_u24 v{vPK}, 28, v{vT3}
            v_sub_u32 v{vT2}, v{vT2}, v{vPK}
            v_lshlrev_b32 v{vT3}, s{sT2}, v{vT3}
            v_lshrrev_b32 v{vPK}, 3, v{vT2}
            v_lshl_add_u32 v{vT3}, v{vPK}, 9, v{vT3}
            v_and_b32 v{vT2}, 4, v{vT2}
            v_lshl_add_u32 v{vT3}, v{vT2}, 1, v{vT3}
            v_lshl_add_u32 v{vEO+j}, v{vT0}, 4, v{vT3}
            """)
        a(f"""
        s_lshl_b32 s{sOB}, s{sHG}, 8
        s_lshl_b32 s{sT3}, s{sMT}, 2
        s_add_u32 s{sOB}, s{sOB}, s{sT3}
        s_add_u32 s{sOB}, s{sOB}, s{sMQ}
        s_add_u32 s{sT3}, s{sTY}, 11
        s_lshl_b32 s{sOB}, s{sOB}, s{sT3}
        s_mul_i32 s{sT3}, s{sTY}, {KV}
        s_add_u32 s{sOB}, s{sOB}, s{sT3}
        s_cmp_eq_u32 s{sTY}, 0
        s_cselect_b32 s{sSC}, {f2u(QSCALE)}, 1.0
        s_nop 7
        """)
        for i in range(2):
            for j in range(NT):
                d = ACC + (i*4 + j)*4
                for r in range(4):
                    a(f"v_mul_f32 v{d+r}, s{sSC}, v{d+r}")
                a(f"v_cvt_pk_bf16_f32 v{d}, v{d}, v{d+1}")
                a(f"v_cvt_pk_bf16_f32 v{d+1}, v{d+2}, v{d+3}")
                a(f"buffer_store_dwordx2 v[{d}:{d+1}], v{vEO+j}, s[{WS}:{WS+3}], s{sOB} offen offset:{i*256}")
        a(f"s_branch {lend}")
        a.label(lq)
        a(f"""
        v_lshlrev_b32 v{vT2}, 14, v{vT1}
        v_lshl_add_u32 v{vEO}, v{vT0}, 2, v{vT2}
        v_add_u32 v{vEO+1}, 8192, v{vEO}
        s_mul_i32 s{sOB}, s{sHG}, {56*8192}
        s_lshr_b32 s{sT3}, s{sMT}, 3
        s_lshl_b32 s{sT3}, s{sT3}, 12
        s_add_u32 s{sOB}, s{sOB}, s{sT3}
        s_lshl_b32 s{sT3}, s{sMQ}, 10
        s_add_u32 s{sOB}, s{sOB}, s{sT3}
        s_and_b32 s{sT3}, s{sMT}, 7
        s_lshl_b32 s{sT3}, s{sT3}, 6
        s_add_u32 s{sOB}, s{sOB}, s{sT3}
        s_add_u32 s{sOB}, s{sOB}, {X1F + nh*4*8*8192}
        s_nop 7
        """)
        for j in range(NT):
            for i in range(2):
                d = ACC + (i*4 + j)*4
                a(f"v_cvt_pk_bf16_f32 v{d}, v{d}, v{d+1}")
                a(f"v_cvt_pk_bf16_f32 v{d+1}, v{d+2}, v{d+3}")
                a(f"buffer_store_dword v{d}, v{vEO}, s[{WS}:{WS+3}], s{sOB} offen offset:{i*512}")
                a(f"buffer_store_dword v{d+1}, v{vEO+1}, s[{WS}:{WS+3}], s{sOB} offen offset:{i*512}")
            a(f"s_add_u32 s{sOB}, s{sOB}, {8*8192}")
        a.label(lend)
        a("s_endpgm")

    def epi_T1(nh):
        NT = 4 if nh == 0 else 3
        a(f"""
        v_and_b32 v{vT0}, 15, v{vLANE}
        v_bfe_u32 v{vT1}, v{vLANE}, 4, 1
        v_lshlrev_b32 v{vT1}, 9, v{vT1}
        v_lshrrev_b32 v{vT2}, 5, v{vLANE}
        v_lshl_add_u32 v{vT1}, v{vT2}, 3, v{vT1}
        """)
        for j in range(NT):
            a(f"""
            v_add_u32 v{vT2}, {16*(j+4*nh)}, v{vT0}
            v_mul_u32_u24 v{vT3}, 2341, v{vT2}
            v_lshrrev_b32 v{vT3}, 16, v{vT3}
            v_mul_u32_u24 v{vPK}, 28, v{vT3}
            v_sub_u32 v{vT2}, v{vT2}, v{vPK}
            v_lshl_add_u32 v{vT3}, v{vT3}, 18, v{vT1}
            v_lshl_add_u32 v{vEO+j}, v{vT2}, 4, v{vT3}
            """)
        a(f"""
        s_lshl_b32 s{sOB}, s{sHG}, 8
        s_lshl_b32 s{sT3}, s{sMT}, 2
        s_add_u32 s{sOB}, s{sOB}, s{sT3}
        s_add_u32 s{sOB}, s{sOB}, s{sMQ}
        s_lshl_b32 s{sOB}, s{sOB}, 12
        s_add_u32 s{sOB}, s{sOB}, {KV + 2048}
        s_nop 7
        """)
        for i in range(2):
            for j in range(NT):
                d = ACC + (i*4 + j)*4
                a(f"v_cvt_pk_bf16_f32 v{d}, v{d}, v{d+1}")
                a(f"v_cvt_pk_bf16_f32 v{d+1}, v{d+2}, v{d+3}")
                a(f"buffer_store_dwordx2 v[{d}:{d+1}], v{vEO+j}, s[{WS}:{WS+3}], s{sOB} offen offset:{i*1024}")
        a("s_endpgm")

    mainloop(0, 0); epi_T0(0)
    a.label("L_k1_t0n1"); a.restore(snap0)
    mainloop(0, 1); epi_T0(1)
    a.label("L_k1_v"); a.restore(snap0)
    a(f"""
    s_cmp_eq_u32 s{sNH}, 1
    s_cbranch_scc1 L_k1_t1n1
    """)
    mainloop(1, 0); epi_T1(0)
    a.label("L_k1_t1n1"); a.restore(snap0)
    mainloop(1, 1); epi_T1(1)
    a.label("L_k1_end")
    a("s_endpgm")
    return a.text(), kdesc(name, NV, 64), f"; @launch kernel={name} grid=(256,1,1) block=(512,1,1) lds={K1_LDS}"
```

```python
from asmlib import *
from layout import *
from tables import FFT_A1, FFT_A2, FFT_TW1, FFT_TW2, FFT_SIZE
import struct
def f2u(f): return struct.unpack("<I", struct.pack("<f", f))[0]

CH = 16384
NSLOT = 8
NCH = 16
LDS_T = NSLOT * CH
LDS_Y = LDS_T + 32 * 272
LDS_R = LDS_Y + 32 * 272
K2_LDS = LDS_R + 64 * 144
ND = 3
AHEAD = 3

def gen_k2():
    a = Asm()
    name = "k2_kernel"
    a.lines.append(khead(name))
    WS, TB, XS, GW = 4, 8, 12, 16
    sW, sH, sQB, sT0, sT1, sT2, sT3 = 30, 31, 32, 33, 34, 35, 36
    sKVO, sM0, sRT, sKH = 37, 38, 39, 40
    sCNT = 41
    vLANE = 1
    vT0, vT1, vT2, vT3 = 2, 3, 4, 5
    a(f"""
    s_cmp_ge_u32 s2, 256
    s_cbranch_scc1 L_k2_end
    s_load_dwordx2 s[24:25], s[0:1], 72
    s_load_dwordx2 s[26:27], s[0:1], 0
    s_load_dwordx2 s[28:29], s[0:1], 48
    s_getpc_b64 s[20:21]
    s_add_u32 s20, s20, tbl_fft@rel32@lo+4
    s_addc_u32 s21, s21, tbl_fft@rel32@hi+12
    v_and_b32 v{vLANE}, 63, v0
    v_lshrrev_b32 v{vT0}, 6, v0
    s_and_b32 s{sT0}, s2, 7
    s_lshl_b32 s{sT0}, s{sT0}, 1
    v_readfirstlane_b32 s{sW}, v{vT0}
    s_bfe_u32 s{sT1}, s2, 0x10003
    s_add_u32 s{sH}, s{sT0}, s{sT1}
    s_lshr_b32 s{sQB}, s2, 4
    s_waitcnt lgkmcnt(0)
    """)
    srd(a, WS, "s24", "s25", WS_USED)
    srd(a, TB, "s20", "s21", FFT_SIZE)
    srd(a, XS, "s26", "s27", 2048*896)
    srd(a, GW, "s28", "s29", 896)
    a(f"""
    s_cmp_ge_u32 s{sW}, 8
    s_cbranch_scc1 L_k2_fft
    """)
    vDMA, vKV0, vKV1, vQO = 6, 7, 8, 9
    Q, KF, VF, S, P, O = 16, 24, 40, 56, 88, 104
    a(f"""
    v_lshlrev_b32 v{vT0}, 4, v{vLANE}
    s_lshl_b32 s{sM0}, s{sW}, 11
    v_add_u32 v{vDMA}, s{sM0}, v{vT0}
    s_lshl_b32 s{sKVO}, s{sH}, 18
    s_add_u32 s{sKVO}, s{sKVO}, {KV}
    """)
    def dma(c):
        a(f"s_add_u32 m0, s{sM0}, {(c % NSLOT) * CH}")
        a("s_nop 0")
        a.vmem(f"buffer_load_dwordx4 v{vDMA}, s[{WS}:{WS+3}], s{sKVO} offen lds", f"c{c}")
        a.vmem(f"buffer_load_dwordx4 v{vDMA}, s[{WS}:{WS+3}], s{sKVO} offen offset:1024 lds", f"c{c}")
        a(f"s_add_u32 s{sKVO}, s{sKVO}, {CH}")
    dma(0)
    a(f"""
    s_and_b32 s{sT0}, s{sW}, 3
    s_lshl_b32 s{sRT}, s{sQB}, 2
    s_add_u32 s{sRT}, s{sRT}, s{sT0}
    s_lshl_b32 s{sT1}, s{sH}, 6
    s_add_u32 s{sT1}, s{sT1}, s{sRT}
    s_lshl_b32 s{sT1}, s{sT1}, 11
    s_lshr_b32 s{sKH}, s{sW}, 2
    """)
    a.vmem(f"buffer_load_dwordx4 {vr(Q,4)}, v{vT0}, s[{WS}:{WS+3}], s{sT1} offen", "q")
    a.vmem(f"buffer_load_dwordx4 {vr(Q+4,4)}, v{vT0}, s[{WS}:{WS+3}], s{sT1} offen offset:1024", "q")
    for c in range(1, AHEAD + 1): dma(c)
    a(f"""
    s_lshl_b32 s{sT1}, s{sKH}, 12
    v_add_u32 v{vKV0}, s{sT1}, v{vT0}
    v_add_u32 v{vKV1}, 0x10000, v{vKV0}
    """)
    def tile_addr(t, frag):
        c = t // 2; slot = c % NSLOT
        base = vKV0 if slot < 4 else vKV1
        return base, (slot % 4) * CH + (t % 2) * 8192 + frag * 1024
    def rdK(t):
        for f in range(2):
            b, o = tile_addr(t, f)
            a.lds(f"ds_read_b128 {vr(KF + (t%2)*8 + f*4, 4)}, v{b} offset:{o}", f"K{t}")
    def rdV(t):
        for f in range(2):
            b, o = tile_addr(t, 2 + f)
            a.lds(f"ds_read_b128 {vr(VF + (t%2)*8 + f*4, 4)}, v{b} offset:{o}", f"V{t}")
    def qk(t, f):
        d = vr(S + (t%2)*16, 16)
        c = "0" if f == 0 else d
        return f"v_mfma_f32_32x32x16_bf16 {d}, {vr(KF + (t%2)*8 + f*4, 4)}, {vr(Q + f*4, 4)}, {c}"
    def pv(t, f):
        d = vr(O, 16)
        c = "0" if (t == 0 and f == 0) else d
        return f"v_mfma_f32_32x32x16_bf16 {d}, {vr(VF + (t%2)*8 + f*4, 4)}, {vr(P + (t%2)*8 + f*4, 4)}, {c}"
    a.wait_vm(["c0", "q"])
    a("s_barrier")
    rdK(0); rdK(1)
    a.wait_lg("K0")
    a(qk(0, 0)); a(qk(0, 1))
    NTL = 32
    for i in range(NTL):
        if i % 2 == 0 and (i + 2) // 2 < NCH:
            c = (i + 2) // 2
            a.wait_vm(f"c{c}")
            a("s_barrier")
            if c + AHEAD < NCH: dma(c + AHEAD)
        if i + 2 < NTL: rdK(i + 2)
        rdV(i)
        w = []
        if i + 1 < NTL: w.append(f"K{i+1}")
        if i >= 1: w.append(f"V{i-1}")
        a.wait_lg(w)
        if i == 0: a("s_nop 7")
        s0 = S + (i%2)*16; p0 = P + (i%2)*8
        e = [f"v_exp_f32 v{s0+k}, v{s0+k}" for k in range(16)]
        cv = [f"v_cvt_pk_bf16_f32 v{p0+k}, v{s0+2*k}, v{s0+2*k+1}" for k in range(8)]
        m = [qk(i+1, 0) if i + 1 < NTL else None, pv(i-1, 0) if i >= 1 else None,
             qk(i+1, 1) if i + 1 < NTL else None, pv(i-1, 1) if i >= 1 else None]
        for g in range(4):
            a(e[4*g])
            if m[g]: a(m[g])
            a(e[4*g+1]); a(e[4*g+2]); a(e[4*g+3])
            a(cv[2*g]); a(cv[2*g+1])
    a.wait_lg(f"V{NTL-1}")
    a("s_nop 1")
    a(pv(NTL-1, 0)); a(pv(NTL-1, 1))
    a(f"""
    s_and_b32 s{sT0}, s{sW}, 3
    s_lshl_b32 s{sT0}, s{sT0}, 12
    v_lshlrev_b32 v{vT0}, 4, v{vLANE}
    v_add_u32 v{vT0}, s{sT0}, v{vT0}
    s_cmp_eq_u32 s{sKH}, 0
    s_cbranch_scc1 L_k2_owner
    s_nop 15
    """)
    for r in range(4):
        a(f"ds_write_b128 v{vT0}, {vr(O + 4*r, 4)} offset:{r*1024}")
    a("""
    s_waitcnt lgkmcnt(0)
    s_barrier
    s_endpgm
    """)
    a.label("L_k2_owner")
    vOO = 10
    a(f"""
    v_lshrrev_b32 v{vT1}, 5, v{vLANE}
    s_mul_i32 s{sT1}, s{sH}, 7
    v_add_u32 v{vT1}, s{sT1}, v{vT1}
    v_and_b32 v{vT2}, 1, v{vT1}
    v_lshrrev_b32 v{vT1}, 1, v{vT1}
    v_lshlrev_b32 v{vT1}, 9, v{vT1}
    v_lshl_add_u32 v{vT1}, v{vT2}, 3, v{vT1}
    v_and_b32 v{vT2}, 31, v{vLANE}
    v_lshl_add_u32 v{vOO}, v{vT2}, 4, v{vT1}
    v_mov_b32 v{vT2}, 0x7fffffff
    v_cmp_gt_u32 vcc, 32, v{vLANE}
    s_mul_i32 s{sT1}, s{sRT}, 28672
    s_add_u32 s{sT1}, s{sT1}, {OF}
    v_cndmask_b32 v{vOO+1}, v{vT2}, v{vOO}, vcc
    s_barrier
    """)
    for r in range(4):
        a(f"ds_read_b128 {vr(S + 4*r, 4)}, v{vT0} offset:{r*1024}")
    a("s_waitcnt lgkmcnt(0)")
    for r in range(16):
        a(f"v_add_f32 v{O+r}, v{O+r}, v{S+r}")
    a.label("L_k2_final")
    vL, vL2, vC = 14, 15, vT3
    a(f"""
    v_mov_b32 v{vL}, v{O+12}
    v_mov_b32 v{vL2}, v{O+12}
    v_mov_b32 v{vC}, 0
    s_nop 1
    v_permlane32_swap_b32 v{vL}, v{vL2}
    """)
    for r in range(12):
        a(f"v_fma_f32 v{vC}, v{O+r}, 0, v{vC}")
    a(f"""
    v_mov_b32 v{vT2}, 0
    v_fma_f32 v{vT2}, v{O+12}, 0, v{vT2}
    v_fma_f32 v{vT2}, v{O+13}, 0, v{vT2}
    v_fma_f32 v{vT2}, v{O+14}, 0, v{vT2}
    v_fma_f32 v{vT2}, v{O+15}, 0, v{vT2}
    v_cmp_gt_u32 vcc, 32, v{vLANE}
    v_rcp_f32 v{vL}, v{vL2}
    s_nop 0
    v_cndmask_b32 v{vT2}, 0, v{vT2}, vcc
    v_add_f32 v{vC}, v{vC}, v{vT2}
    v_add_f32 v{vC}, v{vC}, v{vL2}
    s_cmp_eq_u32 s{sKH}, 2
    s_cbranch_scc1 L_k2_store
    v_mov_b32 v{vT2}, {f2u(2.0**-24)}
    v_cmp_ngt_f32 vcc, v{vC}, v{vT2}
    v_mov_b32 v{vT2}, {f2u(2.0**40)}
    v_cmp_nlt_f32 s[{sT2}:{sT2+1}], v{vC}, v{vT2}
    """.replace(f"s[{sT2}:{sT2+1}]", "s[42:43]"))
    a(f"""
    s_or_b64 vcc, vcc, s[42:43]
    s_cbranch_vccnz L_k2_fallback
    """)
    a.label("L_k2_store")
    for r in range(16):
        a(f"v_mul_f32 v{O+r}, v{O+r}, v{vL}")
    for qd in range(4):
        a(f"v_cvt_pk_bf16_f32 v{O+4*qd}, v{O+4*qd}, v{O+4*qd+1}")
        a(f"v_cvt_pk_bf16_f32 v{O+4*qd+1}, v{O+4*qd+2}, v{O+4*qd+3}")
        vo = vOO + 1 if qd == 3 else vOO
        a(f"buffer_store_dwordx2 {vr(O+4*qd, 2)}, v{vo}, s[{WS}:{WS+3}], s{sT1} offen offset:{qd*512}")
    a("s_endpgm")
    a.label("L_k2_fallback")
    vM, vMN, vAL = 6, 7, 8
    a(f"""
    s_mov_b32 s{sKH}, 2
    s_lshl_b32 s{sKVO}, s{sH}, 18
    s_add_u32 s{sKVO}, s{sKVO}, {KV}
    v_lshlrev_b32 v{vT0}, 4, v{vLANE}
    v_mov_b32 v{vM}, 0xff800000
    s_mov_b32 s{sCNT}, 0
    """)
    for r in range(16): a(f"v_mov_b32 v{O+r}, 0")
    a.label("L_k2_fbloop")
    for f in range(4):
        dst = (KF + f*4) if f < 2 else (VF + (f-2)*4)
        a(f"buffer_load_dwordx4 {vr(dst,4)}, v{vT0}, s[{WS}:{WS+3}], s{sKVO} offen offset:{f*1024}")
    a(f"""
    s_waitcnt vmcnt(0)
    v_mfma_f32_32x32x16_bf16 {vr(S,16)}, {vr(KF,4)}, {vr(Q,4)}, 0
    v_mfma_f32_32x32x16_bf16 {vr(S,16)}, {vr(KF+4,4)}, {vr(Q+4,4)}, {vr(S,16)}
    s_nop 15
    s_nop 3
    v_mov_b32 v{vMN}, v{vM}
    """)
    for r in range(0, 16, 2):
        a(f"v_max3_f32 v{vMN}, v{S+r}, v{S+r+1}, v{vMN}")
    a(f"""
    v_mov_b32 v{vT1}, v{vMN}
    v_mov_b32 v{vT2}, v{vMN}
    s_nop 1
    v_permlane32_swap_b32 v{vT1}, v{vT2}
    s_nop 1
    v_max3_f32 v{vMN}, v{vMN}, v{vT1}, v{vT2}
    v_sub_f32 v{vAL}, v{vM}, v{vMN}
    v_exp_f32 v{vAL}, v{vAL}
    v_mov_b32 v{vM}, v{vMN}
    """)
    for r in range(16):
        a(f"v_sub_f32 v{S+r}, v{S+r}, v{vMN}")
        a(f"v_exp_f32 v{S+r}, v{S+r}")
    for r in range(16):
        a(f"v_mul_f32 v{O+r}, v{O+r}, v{vAL}")
    for k in range(8):
        a(f"v_cvt_pk_bf16_f32 v{P+k}, v{S+2*k}, v{S+2*k+1}")
    a(f"""
    s_nop 1
    v_mfma_f32_32x32x16_bf16 {vr(O,16)}, {vr(VF,4)}, {vr(P,4)}, {vr(O,16)}
    v_mfma_f32_32x32x16_bf16 {vr(O,16)}, {vr(VF+4,4)}, {vr(P+4,4)}, {vr(O,16)}
    s_add_u32 s{sKVO}, s{sKVO}, 4096
    s_add_u32 s{sCNT}, s{sCNT}, 1
    s_nop 15
    s_nop 3
    s_cmp_lt_u32 s{sCNT}, 64
    s_cbranch_scc1 L_k2_fbloop
    s_branch L_k2_final
    """)

    a.label("L_k2_fft")
    a.vm = []; a.lg = []
    sFW, sK, sSL, sMT1, sNT2 = 37, 38, 39, 40, 41
    B1, A1, TW1, TW2, A2, WR, ACC, B2 = 16, 32, 48, 64, 80, 112, 120, 136
    PK = 16
    vL16, vA, vB, vC2 = 6, 7, 8, 9
    a(f"""
    s_setprio 3
    s_sub_u32 s{sFW}, s{sW}, 8
    v_lshlrev_b32 v{vL16}, 4, v{vLANE}
    s_cmp_ge_u32 s2, 225
    s_cbranch_scc1 L_k2_gate
    s_lshr_b32 s{sMT1}, s{sFW}, 1
    s_and_b32 s{sNT2}, s{sFW}, 1
    s_cmp_eq_u32 s2, 224
    s_cselect_b32 s{sSL}, 0, s2
    s_lshl_b32 s{sT0}, s{sSL}, 13
    s_lshl_b32 s{sT1}, s{sNT2}, 12
    s_add_u32 s{sT0}, s{sT0}, s{sT1}
    s_add_u32 s{sT0}, s{sT0}, {X1F}
    s_lshl_b32 s{sT1}, s{sMT1}, 12
    s_lshl_b32 s{sT2}, s{sFW}, 12
    s_add_u32 s{sT3}, s{sT2}, {FFT_TW1}
    """)
    for ks in range(4):
        a.vmem(f"buffer_load_dwordx4 {vr(B1+4*ks,4)}, v{vL16}, s[{WS}:{WS+3}], s{sT0} offen offset:{ks*1024}", "b1")
    for ks in range(4):
        a.vmem(f"buffer_load_dwordx4 {vr(A1+4*ks,4)}, v{vL16}, s[{TB}:{TB+3}], s{sT1} offen offset:{ks*1024}", "a1")
    for i in range(4):
        a.vmem(f"buffer_load_dwordx4 {vr(TW1+4*i,4)}, v{vL16}, s[{TB}:{TB+3}], s{sT3} offen offset:{i*1024}", "tw1")
    a("s_barrier")
    a(f"""
    s_lshl_b32 s{sT1}, s{sFW}, 13
    s_add_u32 s{sT1}, s{sT1}, {FFT_A2}
    s_add_u32 s{sT0}, s{sT1}, 4096
    s_add_u32 s{sT3}, s{sT2}, {FFT_TW2}
    """)
    for ks in range(8):
        so = sT1 if ks < 4 else sT0
        a.vmem(f"buffer_load_dwordx4 {vr(A2+4*ks,4)}, v{vL16}, s[{TB}:{TB+3}], s{so} offen offset:{(ks%4)*1024}", "a2")
    a(f"""
    v_and_b32 v{vT0}, 31, v{vLANE}
    v_lshrrev_b32 v{vT1}, 5, v{vLANE}
    v_lshlrev_b32 v{vT2}, 10, v{vT1}
    v_lshl_add_u32 v{vT2}, v{vT0}, 2, v{vT2}
    s_lshl_b32 s{sT0}, s2, 13
    s_lshl_b32 s{sT1}, s{sFW}, 11
    s_add_u32 s{sT0}, s{sT0}, s{sT1}
    s_add_u32 s{sT0}, s{sT0}, {WF}
    """)
    for p in range(8):
        a.vmem(f"buffer_load_dword v{WR+p}, v{vT2}, s[{WS}:{WS+3}], s{sT0} offen offset:{p*128}", "w")
    for i in range(4):
        a.vmem(f"buffer_load_dwordx4 {vr(TW2+4*i,4)}, v{vL16}, s[{TB}:{TB+3}], s{sT3} offen offset:{i*1024}", "tw2")
    for _ in range(ND - 1): a("s_barrier")
    vW1, vR2, vWY, vW3, vR4, vZO = 10, 11, 12, 13, 14, 15
    a(f"""
    v_mul_u32_u24 v{vT2}, {8*272}, v{vT1}
    v_lshl_add_u32 v{vT2}, v{vT0}, 2, v{vT2}
    s_mul_i32 s{sT0}, s{sMT1}, {16*272}
    s_lshl_b32 s{sT1}, s{sNT2}, 7
    s_add_u32 s{sT0}, s{sT0}, s{sT1}
    s_add_u32 s{sT0}, s{sT0}, {LDS_T}
    v_add_u32 v{vW1}, s{sT0}, v{vT2}
    v_mul_u32_u24 v{vT2}, 272, v{vT0}
    v_lshl_add_u32 v{vT3}, v{vT1}, 4, v{vT2}
    v_add_u32 v{vR2}, {LDS_T}, v{vT3}
    v_lshl_add_u32 v{vT3}, v{vT1}, 5, v{vT2}
    s_lshl_b32 s{sT0}, s{sFW}, 6
    s_add_u32 s{sT0}, s{sT0}, {LDS_Y}
    v_add_u32 v{vWY}, s{sT0}, v{vT3}
    v_mul_u32_u24 v{vT2}, {8*144}, v{vT1}
    v_lshl_add_u32 v{vT2}, v{vT0}, 2, v{vT2}
    s_mul_i32 s{sT0}, s{sFW}, {16*144}
    s_add_u32 s{sT0}, s{sT0}, {LDS_R}
    v_add_u32 v{vW3}, s{sT0}, v{vT2}
    v_mul_u32_u24 v{vT2}, 144, v{vT0}
    v_lshl_add_u32 v{vT2}, v{vT1}, 4, v{vT2}
    s_mul_i32 s{sT0}, s{sNT2}, {32*144}
    s_add_u32 s{sT0}, s{sT0}, {LDS_R}
    v_add_u32 v{vR4}, s{sT0}, v{vT2}
    v_lshlrev_b32 v{vT2}, 6, v{vT0}
    v_lshl_add_u32 v{vZO}, v{vT1}, 4, v{vT2}
    """)
    a.wait_vm(["b1", "a1"])
    a(f"""
    s_cmp_eq_u32 s2, 0
    s_cbranch_scc1 L_k2_sp0
    s_cmp_eq_u32 s2, 224
    s_cbranch_scc0 L_k2_spdone
    """)
    for r in range(16): a(f"v_lshrrev_b32 v{B1+r}, 16, v{B1+r}")
    a("s_branch L_k2_spdone")
    a.label("L_k2_sp0")
    for r in range(16): a(f"v_and_b32 v{B1+r}, 0xffff, v{B1+r}")
    a.label("L_k2_spdone")
    a("s_nop 1")
    def mm(A, B, n):
        for ks in range(n):
            c = "0" if ks == 0 else vr(ACC, 16)
            a(f"v_mfma_f32_32x32x16_bf16 {vr(ACC,16)}, {vr(A+4*ks,4)}, {vr(B+4*ks,4)}, {c}")
    def cmul_tw(TW):
        for p in range(8):
            ar, ai, tr, ti = ACC+2*p, ACC+2*p+1, TW+2*p, TW+2*p+1
            a(f"""
            v_mul_f32 v{vT2}, v{ar}, v{tr}
            v_mul_f32 v{vT3}, v{ar}, v{ti}
            v_fma_f32 v{vT2}, -v{ai}, v{ti}, v{vT2}
            v_fmac_f32 v{vT3}, v{ai}, v{tr}
            v_cvt_pk_bf16_f32 v{PK+p}, v{vT2}, v{vT3}
            """)
    mm(A1, B1, 4)
    a.wait_vm("tw1")
    a("s_nop 15")
    cmul_tw(TW1)
    for p in range(8):
        a(f"ds_write_b32 v{vW1}, v{PK+p} offset:{p*272}")
    a("s_waitcnt lgkmcnt(0)")
    a("s_barrier")
    for ks in range(8):
        a.lds(f"ds_read_b128 {vr(B2+4*ks,4)}, v{vR2} offset:{ks*32}", f"b2_{ks}")
    a.wait_vm("a2")
    for ks in range(8):
        a.wait_lg(f"b2_{ks}")
        c = "0" if ks == 0 else vr(ACC, 16)
        a(f"v_mfma_f32_32x32x16_bf16 {vr(ACC,16)}, {vr(A2+4*ks,4)}, {vr(B2+4*ks,4)}, {c}")
    a.wait_vm("w")
    for p in range(8):
        a(f"v_lshlrev_b32 v{TW1+2*p}, 16, v{WR+p}")
        a(f"v_and_b32 v{TW1+2*p+1}, 0xffff0000, v{WR+p}")
    for p in range(8):
        ar, ai, tr, ti = ACC+2*p, ACC+2*p+1, TW1+2*p, TW1+2*p+1
        a(f"""
        v_mul_f32 v{vT2}, v{ar}, v{tr}
        v_mul_f32 v{vT3}, v{ar}, v{ti}
        v_fma_f32 v{vT2}, -v{ai}, v{ti}, v{vT2}
        v_fmac_f32 v{vT3}, v{ai}, v{tr}
        v_cvt_pk_bf16_f32 v{PK+p}, v{vT2}, -v{vT3}
        """)
    a(f"""
    ds_write_b128 v{vWY}, {vr(PK,4)}
    ds_write_b128 v{vWY}, {vr(PK+4,4)} offset:16
    s_waitcnt lgkmcnt(0)
    s_barrier
    """)
    for ks in range(8):
        a.lds(f"ds_read_b128 {vr(B2+4*ks,4)}, v{vR2} offset:{ks*32 + (LDS_Y-LDS_T)}", f"b3_{ks}")
    for ks in range(8):
        a.wait_lg(f"b3_{ks}")
        c = "0" if ks == 0 else vr(ACC, 16)
        a(f"v_mfma_f32_32x32x16_bf16 {vr(ACC,16)}, {vr(A2+4*ks,4)}, {vr(B2+4*ks,4)}, {c}")
    a.wait_vm("tw2")
    a("s_nop 15")
    cmul_tw(TW2)
    for p in range(8):
        a(f"ds_write_b32 v{vW3}, v{PK+p} offset:{p*144}")
    a("s_waitcnt lgkmcnt(0)")
    a("s_barrier")
    for ks in range(4):
        a.lds(f"ds_read_b128 {vr(B2+4*ks,4)}, v{vR4} offset:{ks*32}", f"b4_{ks}")
    for ks in range(4):
        a.wait_lg(f"b4_{ks}")
        c = "0" if ks == 0 else vr(ACC, 16)
        a(f"v_mfma_f32_32x32x16_bf16 {vr(ACC,16)}, {vr(A1+4*ks,4)}, {vr(B2+4*ks,4)}, {c}")
    a(f"""
    s_lshl_b32 s{sT0}, s2, 13
    s_cmp_eq_u32 s2, 224
    s_cselect_b32 s{sT0}, 4096, s{sT0}
    s_lshl_b32 s{sT1}, s{sNT2}, 11
    s_add_u32 s{sT0}, s{sT0}, s{sT1}
    s_lshl_b32 s{sT1}, s{sMT1}, 5
    s_add_u32 s{sT0}, s{sT0}, s{sT1}
    s_add_u32 s{sT0}, s{sT0}, {ZT}
    s_add_u32 s{sT1}, s{sT0}, 4096
    s_nop 7
    """)
    for q in range(4):
        a(f"v_cvt_pk_bf16_f32 v{PK+q}, v{ACC+4*q}, v{ACC+4*q+2}")
        a(f"v_cvt_pk_bf16_f32 v{PK+4+q}, -v{ACC+4*q+1}, -v{ACC+4*q+3}")
    a(f"""
    buffer_store_dwordx4 {vr(PK,4)}, v{vZO}, s[{WS}:{WS+3}], s{sT0} offen
    s_cmp_eq_u32 s{sSL}, 0
    s_cbranch_scc1 L_k2_gate
    buffer_store_dwordx4 {vr(PK+4,4)}, v{vZO}, s[{WS}:{WS+3}], s{sT1} offen
    """)
    a.label("L_k2_gate")
    XA, XB, GWr = 32, 36, 40
    U = 48
    a(f"""
    s_lshl_b32 s{sT0}, s2, 3
    s_lshl_b32 s{sT1}, s{sFW}, 1
    s_add_u32 s{sT0}, s{sT0}, s{sT1}
    s_and_b32 s{sT1}, s{sT0}, 31
    s_lshl_b32 s{sT1}, s{sT1}, 6
    s_lshr_b32 s{sT2}, s{sT0}, 5
    s_add_u32 s{sT1}, s{sT1}, s{sT2}
    s_mul_i32 s{sT1}, s{sT1}, 896
    s_add_u32 s{sT2}, s{sT1}, {64*896}
    v_mov_b32 v{vT0}, 0x7fffffff
    v_cmp_gt_u32 vcc, 56, v{vLANE}
    s_nop 1
    v_cndmask_b32 v{vT0}, v{vT0}, v{vL16}, vcc
    buffer_load_dwordx4 {vr(XA,4)}, v{vT0}, s[{XS}:{XS+3}], s{sT1} offen
    buffer_load_dwordx4 {vr(XB,4)}, v{vT0}, s[{XS}:{XS+3}], s{sT2} offen
    buffer_load_dwordx4 {vr(GWr,4)}, v{vT0}, s[{GW}:{GW+3}], 0 offen
    s_waitcnt vmcnt(0)
    """)
    for r in range(4):
        a(f"v_lshlrev_b32 v{U+2*r}, 16, v{GWr+r}")
        a(f"v_and_b32 v{U+2*r+1}, 0xffff0000, v{GWr+r}")
    for X, acc in ((XA, vT2), (XB, vT3)):
        for r in range(4):
            a(f"""
            v_lshlrev_b32 v{vA}, 16, v{X+r}
            v_and_b32 v{vB}, 0xffff0000, v{X+r}
            v_mul_f32 v{vA}, v{vA}, v{U+2*r}
            v_mul_f32 v{vB}, v{vB}, v{U+2*r+1}
            v_cvt_pk_bf16_f32 v{vA}, v{vA}, v{vB}
            v_lshlrev_b32 v{vB}, 16, v{vA}
            v_and_b32 v{vA}, 0xffff0000, v{vA}
            """)
            if r == 0: a(f"v_add_f32 v{acc}, v{vA}, v{vB}")
            else:
                a(f"v_add_f32 v{acc}, v{acc}, v{vA}")
                a(f"v_add_f32 v{acc}, v{acc}, v{vB}")
    for dpp in ("row_shr:1 bound_ctrl:0", "row_shr:2 bound_ctrl:0", "row_shr:4 bound_ctrl:0", "row_shr:8 bound_ctrl:0", "row_bcast:15 row_mask:0xa", "row_bcast:31 row_mask:0xc"):
        a("s_nop 1")
        a(f"v_add_f32_dpp v{vT2}, v{vT2}, v{vT2} {dpp}")
        a(f"v_add_f32_dpp v{vT3}, v{vT3}, v{vT3} {dpp}")
    a(f"""
    v_cvt_pk_bf16_f32 v{vA}, v{vT2}, v{vT3}
    v_lshlrev_b32 v{vT2}, 16, v{vA}
    v_and_b32 v{vT3}, 0xffff0000, v{vA}
    v_mul_f32 v{vT2}, {f2u(-1.4426950408889634)}, v{vT2}
    v_mul_f32 v{vT3}, {f2u(-1.4426950408889634)}, v{vT3}
    v_exp_f32 v{vT2}, v{vT2}
    v_exp_f32 v{vT3}, v{vT3}
    s_nop 0
    v_add_f32 v{vT2}, 1.0, v{vT2}
    v_add_f32 v{vT3}, 1.0, v{vT3}
    v_rcp_f32 v{vT2}, v{vT2}
    v_rcp_f32 v{vT3}, v{vT3}
    s_nop 0
    v_cvt_pk_bf16_f32 v{vA}, v{vT2}, v{vT3}
    v_lshlrev_b32 v{U}, 16, v{vA}
    v_and_b32 v{U+2}, 0xffff0000, v{vA}
    v_sub_f32 v{vT2}, 1.0, v{U}
    v_sub_f32 v{vT3}, 1.0, v{U+2}
    v_cvt_pk_bf16_f32 v{vA}, v{vT2}, v{vT3}
    v_lshlrev_b32 v{U+1}, 16, v{vA}
    v_and_b32 v{U+3}, 0xffff0000, v{vA}
    v_mov_b32 v{vT0}, 0x7fffffff
    v_cmp_eq_u32 vcc, 63, v{vLANE}
    s_lshl_b32 s{sT0}, s{sT0}, 3
    s_add_u32 s{sT0}, s{sT0}, {GT}
    v_cndmask_b32 v{vT0}, v{vT0}, 0, vcc
    buffer_store_dwordx4 {vr(U,4)}, v{vT0}, s[{WS}:{WS+3}], s{sT0} offen
    """)
    a.label("L_k2_end")
    a("s_endpgm")
    return a.text(), kdesc(name, 168, 64), f"; @launch kernel={name} grid=(256,1,1) block=(768,1,1) lds={K2_LDS}"
```

```python
from asmlib import *
from layout import *

STG = 28672
K3_LDS = 4 * STG

def gen_k3():
    a = Asm()
    name = "k3_kernel"
    a.lines.append(khead(name))
    WS, TR, DD, OUT = 4, 8, 12, 16
    sW, sRB, sCT, sT0, sT1, sT2, sT3 = 30, 31, 32, 33, 34, 35, 36
    sROW8, sTSO, sM0, sD0, sD1, sKH = 37, 38, 39, 40, 41, 42
    vLANE = 1
    vT0, vT1, vT2, vT3 = 2, 3, 4, 5
    vTO, vL16, vR0, vR1, vG, vOO, vRED = 6, 7, 8, 9, 10, 12, 13
    TF, ACC, DF = 16, 32, 96
    NV = 208
    a(f"""
    s_cmp_ge_u32 s2, 224
    s_cbranch_scc1 L_k3_end
    s_load_dwordx2 s[24:25], s[0:1], 72
    s_load_dwordx2 s[26:27], s[0:1], 40
    s_load_dwordx2 s[28:29], s[0:1], 56
    s_getpc_b64 s[20:21]
    s_add_u32 s20, s20, tbl_gf@rel32@lo+4
    s_addc_u32 s21, s21, tbl_gf@rel32@hi+12
    v_and_b32 v{vLANE}, 63, v0
    v_lshrrev_b32 v{vT0}, 6, v0
    s_and_b32 s{sT0}, s2, 7
    s_lshr_b32 s{sT1}, s2, 3
    v_readfirstlane_b32 s{sW}, v{vT0}
    s_lshl_b32 s{sRB}, s{sT0}, 2
    s_and_b32 s{sT2}, s{sT1}, 3
    s_add_u32 s{sRB}, s{sRB}, s{sT2}
    s_lshr_b32 s{sCT}, s{sT1}, 2
    s_and_b32 s{sKH}, s{sW}, 1
    v_lshlrev_b32 v{vL16}, 4, v{vLANE}
    s_mul_i32 s{sM0}, s{sW}, {STG}
    v_lshrrev_b32 v{vT0}, 3, v{vLANE}
    v_and_b32 v{vT1}, 7, v{vLANE}
    v_bfe_u32 v{vT2}, v{vLANE}, 4, 1
    v_lshlrev_b32 v{vT2}, 2, v{vT2}
    v_xor_b32 v{vT1}, v{vT1}, v{vT2}
    v_lshlrev_b32 v{vT1}, 4, v{vT1}
    s_waitcnt lgkmcnt(0)
    """)
    srd(a, WS, "s24", "s25", WS_USED)
    srd(a, OUT, "s28", "s29", 2048*896)
    a(f"""
    s_cmp_ge_u32 s{sW}, 2
    s_cbranch_scc1 L_k3_setF
    """)
    srd(a, TR, "s26", "s27", 448*896)
    srd(a, DD, "s24", "s25", WS_USED)
    a(f"""
    s_mov_b32 s{sROW8}, {8*896}
    v_mul_u32_u24 v{vT0}, 896, v{vT0}
    s_mul_i32 s{sTSO}, s{sKH}, {224*896}
    s_lshl_b32 s{sT0}, s{sCT}, 7
    s_add_u32 s{sTSO}, s{sTSO}, s{sT0}
    s_mul_i32 s{sD0}, s{sRB}, {2*28672}
    s_add_u32 s{sD0}, s{sD0}, {OF}
    s_branch L_k3_setdone
    """)
    a.label("L_k3_setF")
    srd(a, TR, "s24", "s25", WS_USED)
    srd(a, DD, "s20", "s21", 14*28672)
    a(f"""
    s_mov_b32 s{sROW8}, {8*4096}
    v_lshlrev_b32 v{vT0}, 12, v{vT0}
    s_mul_i32 s{sTSO}, s{sKH}, {224*4096}
    s_lshl_b32 s{sT0}, s{sRB}, 7
    s_add_u32 s{sTSO}, s{sTSO}, s{sT0}
    s_add_u32 s{sTSO}, s{sTSO}, {ZT}
    s_mul_i32 s{sD0}, s{sCT}, {2*28672}
    """)
    a.label("L_k3_setdone")
    a(f"""
    v_add_u32 v{vTO}, v{vT0}, v{vT1}
    s_mul_i32 s{sT0}, s{sKH}, {14*1024}
    s_add_u32 s{sD0}, s{sD0}, s{sT0}
    s_add_u32 s{sD1}, s{sD0}, 28672
    s_mov_b32 m0, s{sM0}
    s_nop 0
    """)
    for ks in range(14):
        for ii in range(2):
            a.vmem(f"buffer_load_dwordx4 v{vTO}, s[{TR}:{TR+3}], s{sTSO} offen lds", f"k{ks}")
            a(f"s_add_u32 m0, m0, 1024")
            a(f"s_add_u32 s{sTSO}, s{sTSO}, s{sROW8}")
        o = (ks % 4) * 1024
        a.vmem(f"buffer_load_dwordx4 {vr(DF + ks*8, 4)}, v{vL16}, s[{DD}:{DD+3}], s{sD0} offen offset:{o}", f"k{ks}")
        a.vmem(f"buffer_load_dwordx4 {vr(DF + ks*8 + 4, 4)}, v{vL16}, s[{DD}:{DD+3}], s{sD1} offen offset:{o}", f"k{ks}")
        if ks % 4 == 3:
            a(f"s_add_u32 s{sD0}, s{sD0}, 4096")
            a(f"s_add_u32 s{sD1}, s{sD1}, 4096")
    a(f"""
    v_and_b32 v{vT0}, 31, v{vLANE}
    v_lshlrev_b32 v{vT1}, 3, v{vT0}
    s_lshl_b32 s{sT0}, s{sRB}, 9
    s_lshl_b32 s{sT1}, s{sKH}, 8
    s_add_u32 s{sT0}, s{sT0}, s{sT1}
    s_add_u32 s{sT0}, s{sT0}, {GT}
    """)
    a.vmem(f"buffer_load_dwordx2 {vr(vG,2)}, v{vT1}, s[{WS}:{WS+3}], s{sT0} offen", "g")
    a(f"""
    v_lshrrev_b32 v{vT1}, 5, v{vLANE}
    v_bfe_u32 v{vT2}, v{vLANE}, 2, 2
    v_lshl_add_u32 v{vT3}, v{vT1}, 3, v{vT2}
    v_lshlrev_b32 v{vT3}, 7, v{vT3}
    v_lshrrev_b32 v{vT2}, 1, v{vT2}
    v_lshl_add_u32 v{vT3}, v{vT2}, 6, v{vT3}
    v_bfe_u32 v{vT2}, v{vLANE}, 4, 1
    v_lshl_add_u32 v{vT3}, v{vT2}, 5, v{vT3}
    v_and_b32 v{vT2}, 3, v{vLANE}
    v_lshl_add_u32 v{vT3}, v{vT2}, 3, v{vT3}
    v_add_u32 v{vR0}, s{sM0}, v{vT3}
    v_xor_b32 v{vR1}, 64, v{vR0}
    v_mul_u32_u24 v{vOO}, 57344, v{vT0}
    v_lshl_add_u32 v{vOO}, v{vT1}, 3, v{vOO}
    v_add_u32 v{vRED}, s{sM0}, v{vL16}
    s_cmp_ge_u32 s{sW}, 2
    s_cbranch_scc1 L_k3_F
    """)
    snap = a.snapshot()
    def main(typ):
        def reads(ks):
            for hf in range(2):
                for rho in range(2):
                    a.lds(f"ds_read_b64_tr_b16 {vr(TF + (ks%2)*8 + hf*4 + rho*2, 2)}, v{vR0 if hf == 0 else vR1} offset:{ks*2048 + rho*512}", f"r{ks}")
        a.wait_vm("k0"); reads(0)
        for ks in range(14):
            if ks + 1 < 14:
                a.wait_vm(f"k{ks+1}"); reads(ks + 1)
            a.wait_lg(f"r{ks}")
            for c2 in range(2):
                for tt in range(2):
                    d = vr(ACC + (c2*2 + tt)*16, 16)
                    c = "0" if ks == 0 else d
                    if typ == 0: A = vr(TF + (ks%2)*8 + c2*4, 4); B = vr(DF + ks*8 + tt*4, 4)
                    else:        A = vr(DF + ks*8 + c2*4, 4); B = vr(TF + (ks%2)*8 + tt*4, 4)
                    a(f"v_mfma_f32_32x32x16_bf16 {d}, {A}, {B}, {c}")
    def tail(w):
        a("s_nop 15")
        for o in range(4):
            if o == w: continue
            for r in range(4):
                a(f"ds_write_b128 v{vRED}, {vr(ACC + o*16 + 4*r, 4)} offset:{o*4096 + r*1024}")
        a(f"""
        s_lshl_b32 s{sT0}, s{sRB}, 1
        s_add_u32 s{sT0}, s{sT0}, {w & 1}
        s_mul_i32 s{sT0}, s{sT0}, 896
        s_lshl_b32 s{sT1}, s{sCT}, 7
        s_add_u32 s{sT0}, s{sT0}, s{sT1}
        s_add_u32 s{sT0}, s{sT0}, {(w >> 1) * 64}
        v_add_u32 v{vT2}, {2*STG}, v{vL16}
        s_waitcnt vmcnt(0) lgkmcnt(0)
        s_barrier
        """)
        srcs = [s for s in range(4) if s != w]
        for n, s in enumerate(srcs):
            for r in range(4):
                base = vL16 if s < 2 else vT2
                a(f"ds_read_b128 {vr(DF + n*16 + 4*r, 4)}, v{base} offset:{(s % 2)*STG + w*4096 + r*1024}")
        a("s_waitcnt lgkmcnt(0)")
        def part(s, r):
            return ACC + w*16 + r if s == w else DF + srcs.index(s)*16 + r
        R = DF + 48
        for r in range(16):
            a(f"""
            v_add_f32 v{vT0}, v{part(0,r)}, v{part(1,r)}
            v_add_f32 v{vT1}, v{part(2,r)}, v{part(3,r)}
            v_mul_f32 v{vT0}, v{vT0}, v{vG+1}
            v_fma_f32 v{R+r}, v{vT1}, v{vG}, v{vT0}
            """)
        for qd in range(4):
            a(f"v_cvt_pk_bf16_f32 v{R+4*qd}, v{R+4*qd}, v{R+4*qd+1}")
            a(f"v_cvt_pk_bf16_f32 v{R+4*qd+1}, v{R+4*qd+2}, v{R+4*qd+3}")
            a(f"buffer_store_dwordx2 {vr(R+4*qd,2)}, v{vOO}, s[{OUT}:{OUT+3}], s{sT0} offen offset:{qd*16}")
        a("s_endpgm")
    main(0)
    a(f"s_cmp_eq_u32 s{sW}, 1")
    a("s_cbranch_scc1 L_k3_t1")
    tail(0)
    a.label("L_k3_t1"); tail(1)
    a.label("L_k3_F"); a.restore(snap)
    main(1)
    a(f"s_cmp_eq_u32 s{sW}, 3")
    a("s_cbranch_scc1 L_k3_t3")
    tail(2)
    a.label("L_k3_t3"); tail(3)
    a.label("L_k3_end")
    a("s_endpgm")
    return a.text(), kdesc(name, NV, 64), f"; @launch kernel={name} grid=(224,1,1) block=(256,1,1) lds={K3_LDS}"
```

```python
import numpy as np, struct
def bf16(x):
    u = np.array([x], dtype=np.float32).view(np.uint32)[0]
    u = (int(u) + 0x7FFF + ((int(u) >> 16) & 1)) >> 16
    return u & 0xFFFF
def cosv(m, n):
    m = m % n
    v = np.cos(2*np.pi*m/n)
    if abs(v) < 1e-12: v = 0.0
    return v

def emit_longs(vals, per=8):
    out = []
    for i in range(0, len(vals), per):
        out.append(".long " + ",".join(f"0x{v:x}" for v in vals[i:i+per]))
    return "\n".join(out) + "\n"

def fft_const(R, nM):
    ks_n = R // 8
    T = np.zeros((nM, ks_n, 64, 8), dtype=np.uint16)
    for mt in range(nM):
        for ks in range(ks_n):
            for l in range(64):
                hh = l >> 5; m = l & 31
                q = m >> 3; hhD = (m >> 2) & 1; rr = m & 3
                p = 2*q + (rr >> 1); part = rr & 1
                u = 16*mt + 8*hhD + p
                for j in range(8):
                    aidx = 8*ks + 4*hh + (j >> 1); part2 = j & 1
                    c = cosv(aidx*u, R); s = cosv(4*aidx*u - R, 4*R)
                    if part == part2: v = c
                    elif part == 0: v = s
                    else: v = -s
                    T[mt, ks, l, j] = bf16(v)
    return T

def twiddles():
    tw1 = np.zeros((4, 4, 64, 4), dtype=np.float32)
    tw2 = np.zeros((4, 4, 64, 4), dtype=np.float32)
    for w in range(4):
        for i in range(4):
            for l in range(64):
                hh = l >> 5
                for e in range(2):
                    p = 2*i + e
                    b = 32*(w & 1) + (l & 31); u1 = 16*(w >> 1) + 8*hh + p
                    th = 2*np.pi*b*u1/2048
                    tw1[w, i, l, 2*e] = np.cos(th); tw1[w, i, l, 2*e+1] = -np.sin(th)
                    u1 = l & 31; b = 16*w + 8*hh + p
                    th = 2*np.pi*b*u1/2048
                    sc = 2.0/(448*2048)
                    tw2[w, i, l, 2*e] = sc*np.cos(th); tw2[w, i, l, 2*e+1] = -sc*np.sin(th)
    return tw1, tw2

def gen_tables():
    s = ""
    for m in range(448):
        s += f".set cs_{m}, 0x{bf16(cosv(m, 448)):x}\n"
    s += f".set cs_1000, 0x{bf16(0.5):x}\n.set cs_1224, 0x{bf16(-0.5):x}\n"
    s += """.altmacro
.macro em8 a,b,c,d,e,f,g,h
.short cs_\\a, cs_\\b, cs_\\c, cs_\\d, cs_\\e, cs_\\f, cs_\\g, cs_\\h
.endm
.macro quad4 dd, kk, hf
.if \\kk == 0
em8 %(\\hf), %(\\hf+(224*\\dd)%448), %((\\dd)%448), %((\\dd+112)%448), %((2*\\dd)%448), %((2*\\dd+112)%448), %((3*\\dd)%448), %((3*\\dd+112)%448)
.else
em8 %((\\dd*\\kk)%448), %((\\dd*\\kk+112)%448), %((\\dd*(\\kk+1))%448), %((\\dd*(\\kk+1)+112)%448), %((\\dd*(\\kk+2))%448), %((\\dd*(\\kk+2)+112)%448), %((\\dd*(\\kk+3))%448), %((\\dd*(\\kk+3)+112)%448)
.endif
.endm
.p2align 8
tbl_fd:
.set t_d, 0
.rept 448
.set t_k, 0
.rept 56
quad4 %t_d, %t_k, 0
.set t_k, t_k+4
.endr
.set t_d, t_d+1
.endr
.p2align 8
tbl_gf:
.set t_ct, 0
.rept 14
.set t_q, 0
.rept 56
.set t_n, 0
.rept 32
quad4 %(32*t_ct+t_n), %(4*t_q), 1000
.set t_n, t_n+1
.endr
.set t_q, t_q+1
.endr
.set t_ct, t_ct+1
.endr
.noaltmacro
"""
    A1 = fft_const(32, 2); A2 = fft_const(64, 4)
    tw1, tw2 = twiddles()
    s += ".p2align 8\ntbl_fft:\n"
    for arr in (A1, A2, tw1, tw2):
        s += emit_longs(list(np.ascontiguousarray(arr).view(np.uint32).ravel()))
    return s
FFT_A1, FFT_A2, FFT_TW1, FFT_TW2, FFT_SIZE = 0, 8192, 40960, 57344, 73728
```

```python
import sys
from k1 import gen_k1
from tables import gen_tables
HEADER = open("gated_mix__spectral_gfnet__mha_block__prompt.s.ref").read().split("; Override launch")[0]
def build(kernels, path):
    txt = HEADER
    for code, desc, launch in kernels: txt += launch + "\n"
    txt += '.amdgcn_target "amdgcn-amd-amdhsa--gfx950"\n.text\n'
    for code, desc, launch in kernels: txt += code
    txt += '.section .rodata,"a"\n'
    for code, desc, launch in kernels: txt += desc
    txt += gen_tables()
    open(path, "w").write(txt)
if __name__ == "__main__":
    ks = [gen_k1()]
    try:
        from k2 import gen_k2
        ks.append(gen_k2())
        from k3 import gen_k3
        ks.append(gen_k3())
    except ImportError as e:
        print("partial build:", e)
    build(ks, sys.argv[1] if len(sys.argv) > 1 else "gated_mix__spectral_gfnet__mha_block__prompt.s")
```

```python
import re
def instrument(code, kidx, ws_srd, wave_sgpr, mids=None):
    lines = code.split("\n")
    out = []
    started = False
    for i, l in enumerate(lines):
        s = l.strip()
        if not started and s.startswith("s_cbranch_scc1 L_k") and s.endswith("_end"):
            out.append(l)
            out.append("    s_memtime s[64:65]")
            out.append("    s_memrealtime s[66:67]")
            for m in range(6):
                out.append(f"    s_mov_b32 s{80+m}, 0")
            started = True
            continue
        m = re.match(r";\s*STAMP(\d)", s)
        if m:
            k = int(m.group(1))
            out.append("    s_memtime s[76:77]")
            out.append("    s_waitcnt lgkmcnt(0)")
            out.append(f"    s_mov_b32 s{80+k}, s76")
            continue
        if s == "s_endpgm" and not lines[i-1].strip().endswith("_end:"):
            out.append(f"""    s_waitcnt vmcnt(0) lgkmcnt(0)
    s_memtime s[68:69]
    s_memrealtime s[70:71]
    s_mov_b32 s72, s{ws_srd}
    s_mov_b32 s73, s{ws_srd+1}
    s_mov_b32 s74, 0x4000000
    s_mov_b32 s75, 0x20000
    s_lshl_b32 s78, s2, 4
    s_add_u32 s78, s78, s{wave_sgpr}
    s_lshl_b32 s78, s78, 6
    s_add_u32 s78, s78, {(16 + kidx) << 20}
    s_waitcnt lgkmcnt(0)
    s_mov_b64 exec, 1
    v_mov_b32 v2, s64
    v_mov_b32 v3, s66
    v_mov_b32 v4, s68
    v_mov_b32 v5, s70
    v_mov_b32 v6, 0
    buffer_store_dwordx4 v[2:5], v6, s[72:75], s78 offen
    v_mov_b32 v8, s80
    v_mov_b32 v9, s81
    v_mov_b32 v10, s82
    v_mov_b32 v11, s83
    buffer_store_dwordx4 v[8:11], v6, s[72:75], s78 offen offset:16
    v_mov_b32 v12, s84
    v_mov_b32 v13, s85
    buffer_store_dwordx2 v[12:13], v6, s[72:75], s78 offen offset:32""")
        out.append(l)
    return "\n".join(out)
```

```python
from asmlib import *
from layout import *
import math, os, struct
EXP = os.environ.get('K1EXP', '')

SLOT = 31744
NSLOT = 5
LDS_F = SLOT * NSLOT
K1_LDS = LDS_F + 64
QSCALE = (28 ** -0.5) * math.log2(math.e)
def f2u(f): return struct.unpack("<I", struct.pack("<f", f))[0]

def spin_ge(a, vaddr, vtmp, stmp, off, val, first_sleep=False):
    lsp = a.newlabel("sp"); lok = a.newlabel("ok")
    a.label(lsp)
    a(f"""
    ds_read_b32 v{vtmp}, v{vaddr} offset:{off}
    s_waitcnt lgkmcnt(0)
    v_readfirstlane_b32 s{stmp}, v{vtmp}
    s_cmp_ge_u32 s{stmp}, {val}
    s_cbranch_scc1 {lok}
    s_sleep 1
    s_branch {lsp}
    """)
    a.label(lok)
    a.lg = []

def gen_k1():
    a = Asm()
    name = "k1_kernel"
    a.lines.append(khead(name))
    X, BS, WS, WR, WI = 4, 8, 12, 16, 20
    sMT, sTY, sHG, sW, sMQ = 34, 35, 36, 37, 38
    sT0, sT1, sT2, sT3 = 40, 41, 42, 43
    sBROW, sASO, sBSO, sFL = 44, 45, 46, 47
    sMASK56 = 48
    sBCH, sB4, sOB, sSC, sCC, sTOK, sCOL = 50, 51, 52, 53, 54, 55, 56
    sAOFF = 64 - 4
    vLANE = 1
    vT0, vT1, vT2, vT3 = 2, 3, 4, 5
    vFA, vFT, vONE = 6, 7, 8
    a(f"""
    s_cmp_ge_u32 s2, 256
    s_cbranch_scc1 L_k1_end
    s_load_dwordx4 s[24:27], s[0:1], 0
    s_load_dwordx2 s[28:29], s[0:1], 16
    s_load_dwordx2 s[30:31], s[0:1], 32
    s_load_dwordx2 s[32:33], s[0:1], 72
    s_getpc_b64 s[58:59]
    s_add_u32 s58, s58, tbl_fd@rel32@lo+4
    s_addc_u32 s59, s59, tbl_fd@rel32@hi+12
    v_and_b32 v{vLANE}, 63, v0
    v_lshrrev_b32 v{vT0}, 6, v0
    s_and_b32 s{sT0}, s2, 7
    s_lshr_b32 s{sT1}, s2, 3
    v_readfirstlane_b32 s{sW}, v{vT0}
    s_lshr_b32 s{sHG}, s{sT0}, 1
    s_and_b32 s{sT2}, s{sT0}, 1
    s_lshl_b32 s{sT2}, s{sT2}, 3
    s_and_b32 s{sMT}, s{sT1}, 7
    s_add_u32 s{sMT}, s{sMT}, s{sT2}
    s_lshr_b32 s{sTY}, s{sT1}, 3
    s_and_b32 s{sMQ}, s{sW}, 3
    v_mov_b32 v{vFA}, {LDS_F}
    v_mov_b32 v{vONE}, 1
    s_cmp_ge_u32 s{sW}, 4
    s_cbranch_scc0 L_k1_compute
    """)
    vAO, vBO, vWKO, vWSO = 9, 10, 11, 12
    vWT = 16
    vZ = 40
    a(f"""
    s_lshr_b32 s{sTOK}, s{sMT}, 2
    s_lshl_b32 s{sTOK}, s{sTOK}, 9
    s_and_b32 s{sT2}, s{sMT}, 3
    s_lshl_b32 s{sT2}, s{sT2}, 4
    s_add_u32 s{sTOK}, s{sTOK}, s{sT2}
    s_mul_i32 s{sTOK}, s{sTOK}, 896
    v_lshrrev_b32 v{vT0}, 3, v{vLANE}
    v_and_b32 v{vT1}, 7, v{vLANE}
    v_xor_b32 v{vT1}, v{vT1}, v{vT0}
    v_lshlrev_b32 v{vT1}, 4, v{vT1}
    v_mul_u32_u24 v{vT2}, 57344, v{vT0}
    v_and_b32 v{vT3}, 3, v{vT0}
    v_mul_u32_u24 v{vT3}, 57344, v{vT3}
    v_lshrrev_b32 v{vT0}, 2, v{vT0}
    v_mul_u32_u24 v{vT0}, 896, v{vT0}
    v_add_u32 v{vT3}, v{vT3}, v{vT0}
    s_cmp_eq_u32 s{sTY}, 3
    s_cselect_b64 vcc, -1, 0
    s_nop 1
    v_cndmask_b32 v{vT2}, v{vT2}, v{vT3}, vcc
    v_add3_u32 v{vAO}, v{vT2}, v{vT1}, s{sTOK}
    v_mul_u32_u24 v{vT0}, 4682, v{vLANE}
    v_lshrrev_b32 v{vT0}, 16, v{vT0}
    v_mul_u32_u24 v{vT1}, 14, v{vT0}
    v_sub_u32 v{vT1}, v{vLANE}, v{vT1}
    v_lshlrev_b32 v{vT1}, 4, v{vT1}
    v_cmp_gt_u32 vcc, 56, v{vLANE}
    s_mov_b64 s[{sMASK56}:{sMASK56+1}], vcc
    s_mov_b32 s{sBROW}, 2688
    s_cmp_eq_u32 s{sTY}, 3
    s_cselect_b32 s{sBROW}, 896, s{sBROW}
    s_cselect_b32 s{sCOL}, 0, s{sTY}
    s_lshl_b32 s{sCOL}, s{sCOL}, 2
    s_add_u32 s{sCOL}, s{sCOL}, s{sHG}
    s_mul_i32 s{sCOL}, s{sCOL}, 224
    v_mul_lo_u32 v{vT0}, v{vT0}, s{sBROW}
    v_add3_u32 v{vBO}, v{vT0}, v{vT1}, s{sCOL}
    s_lshl_b32 s{sBCH}, s{sBROW}, 6
    s_lshl_b32 s{sB4}, s{sBROW}, 2
    s_lshl_b32 s{sCC}, s{sTY}, 1
    s_add_u32 s{sCC}, s{sCC}, s{sMT}
    {"s_mov_b32 s" + str(sCC) + ", 0" if "norot" in EXP else ""}
    {"s_and_b32 s" + str(sCC) + ", s2, 7" if "rotxcd" in EXP else ""}
    {"s_and_b32 s" + str(sCC) + ", s2, 7" if "rotmix" in EXP else ""}
    {"s_bfe_u32 s" + str(sT2) + ", s2, 0x10003" if "rotmix" in EXP else ""}
    {"s_mul_i32 s" + str(sT2) + ", s" + str(sT2) + ", 3" if "rotmix" in EXP else ""}
    {"s_add_u32 s" + str(sCC) + ", s" + str(sCC) + ", s" + str(sT2) if "rotmix" in EXP else ""}
    s_add_u32 s{sCC}, s{sCC}, s{sMQ}
    """)
    a("s_waitcnt lgkmcnt(0)")
    srd(a, X, "s24", "s25", 2048*896)
    a(f"""
    s_mov_b32 s{BS+2}, {448*2688}
    s_cmp_eq_u32 s{sTY}, 3
    s_cselect_b32 s{BS}, s58, s30
    s_cselect_b32 s{BS+1}, s59, s31
    s_cselect_b32 s{BS+2}, {448*896}, s{BS+2}
    s_mov_b32 s{BS+3}, 0x20000
    s_and_b32 s{BS+1}, s{BS+1}, 0xffff
    """)
    DEPTH = int(os.environ.get('K1DEPTH', '3'))
    sAO = [60, 61, 62, 63]
    sM0A, sM0B, sBW = 57, 39, 22
    a(f"s_mul_i32 s{sT2}, s{sMQ}, {4*896}")
    for ii in range(4):
        a(f"""
        s_mov_b32 s{sT3}, {ii*896}
        s_cmp_eq_u32 s{sTY}, 3
        s_cselect_b32 s{sT3}, {(256*(ii >> 1) + 2*(ii & 1))*896}, s{sT3}
        s_add_u32 s{sAO[ii]}, s{sT3}, s{sT2}
        """)
    a(f"""
    s_lshl_b32 s{sM0A}, s{sMQ}, 12
    s_mul_i32 s{sM0B}, s{sMQ}, 3840
    s_add_u32 s{sM0B}, s{sM0B}, 16384
    s_lshl_b32 s{sT2}, s{sB4}, 2
    s_mul_i32 s{sBW}, s{sT2}, s{sMQ}
    s_sub_u32 s{sCC}, s{sCC}, s{sMQ}
    s_mul_i32 s{sT3}, s{sCC}, 37
    s_lshr_b32 s{sT3}, s{sT3}, 8
    s_mul_i32 s{sT3}, s{sT3}, 7
    s_sub_u32 s{sT3}, s{sCC}, s{sT3}
    s_lshl_b32 s{sASO}, s{sT3}, 7
    s_mul_i32 s{sBSO}, s{sT3}, s{sBCH}
    """)
    def issue(c):
        slot = (c % NSLOT) * SLOT
        for ii in range(4):
            a(f"s_add_u32 m0, s{sM0A}, {slot + ii*1024}")
            a(f"s_add_u32 s{sT2}, s{sAO[ii]}, s{sASO}")
            a.vmem(f"buffer_load_dwordx4 v{vAO}, s[{X}:{X+3}], s{sT2} offen lds", f"c{c}")
        a(f"s_mov_b64 exec, s[{sMASK56}:{sMASK56+1}]")
        a(f"s_add_u32 s{sT2}, s{sBSO}, s{sBW}")
        for ii in range(4):
            a(f"s_add_u32 m0, s{sM0B}, {slot + (ii >> 1)*1920 + (ii & 1)*896}")
            if ii > 0: a(f"s_add_u32 s{sT2}, s{sT2}, s{sB4}")
            else: a("s_nop 0")
            a.vmem(f"buffer_load_dwordx4 v{vBO}, s[{BS}:{BS+3}], s{sT2} offen lds", f"c{c}")
        a(f"""
        s_mov_b64 exec, -1
        s_add_u32 s{sASO}, s{sASO}, 128
        s_add_u32 s{sBSO}, s{sBSO}, s{sBCH}
        s_cmp_eq_u32 s{sASO}, 896
        s_cselect_b32 s{sASO}, 0, s{sASO}
        s_cselect_b32 s{sBSO}, 0, s{sBSO}
        """)
    issue(0)
    a("s_barrier")
    for c in range(1, DEPTH): issue(c)
    for c in range(7):
        a.wait_vm(f"c{c}")
        a(f"""
        s_mov_b64 exec, 1
        ds_add_u32 v{vFA}, v{vONE} offset:{4 + 4*c}
        s_mov_b64 exec, -1
        """)
        if c == 0: a.comment("STAMP2")
        if c == 3: a.comment("STAMP3")
        if c == 6: a.comment("STAMP4")
        n = c + DEPTH
        if n < 7:
            if n >= NSLOT: spin_ge(a, vFA, vFT, sFL, 32 + 4*(n - NSLOT), 4)
            issue(n)
    srd(a, WR, "s26", "s27", 2048*450)
    srd(a, WI, "s28", "s29", 2048*450)
    srd(a, WS, "s32", "s33", WS_USED)
    a.label("L_k1_extra")
    a(f"""
    s_and_b32 s{sT0}, s2, 7
    s_lshr_b32 s{sT1}, s2, 3
    s_lshl_b32 s{sT2}, s{sT0}, 5
    s_add_u32 s{sT2}, s{sT2}, s{sT1}
    s_lshl_b32 s{sT2}, s{sT2}, 3
    s_mul_i32 s{sT3}, s{sT2}, 450
    v_and_b32 v{vT0}, 255, v0
    v_lshlrev_b32 v{vWKO}, 1, v{vT0}
    v_mul_u32_u24 v{vWSO}, {WFS}, v{vT0}
    s_lshl_b32 s{sT2}, s{sT2}, 2
    s_add_u32 s{sT2}, s{sT2}, {WF}
    v_add_u32 v{vWSO}, s{sT2}, v{vWSO}
    v_mov_b32 v{vT1}, 0x7fffffff
    v_cmp_gt_u32 vcc, 225, v{vT0}
    s_nop 1
    v_cndmask_b32 v{vWSO}, v{vT1}, v{vWSO}, vcc
    """)
    for i in range(8):
        a(f"buffer_load_ushort v{vWT+i}, v{vWKO}, s[{WR}:{WR+3}], s{sT3} offen offset:{450*i}")
        a(f"buffer_load_ushort v{vWT+8+i}, v{vWKO}, s[{WI}:{WI+3}], s{sT3} offen offset:{450*i}")
    a(f"""
    s_cmp_eq_u32 s{sTY}, 3
    s_cbranch_scc1 L_k1_paddone
    s_cmp_eq_u32 s{sTY}, 2
    s_cbranch_scc1 L_k1_padv
    """)
    a(f"""
    v_lshrrev_b32 v{vT2}, 7, v{vT0}
    s_lshl_b32 s{sT3}, s{sHG}, 2
    v_add_u32 v{vT2}, s{sT3}, v{vT2}
    v_lshlrev_b32 v{vT2}, 6, v{vT2}
    v_bfe_u32 v{vT3}, v{vT0}, 5, 2
    s_lshl_b32 s{sT3}, s{sMT}, 2
    v_add3_u32 v{vT2}, v{vT2}, v{vT3}, s{sT3}
    s_add_u32 s{sT3}, s{sTY}, 11
    v_lshlrev_b32 v{vT2}, s{sT3}, v{vT2}
    v_and_b32 v{vT3}, 31, v{vT0}
    v_lshl_add_u32 v{vT2}, v{vT3}, 4, v{vT2}
    s_mul_i32 s{sT3}, s{sTY}, {KV}
    s_add_u32 s{sT3}, s{sT3}, {1024+512+8}
    s_lshl_b32 s{sT2}, 0x40000, s{sTY}
    s_add_u32 s{sT2}, s{sT2}, s{sT3}
    v_mov_b32 v{vZ}, 0
    v_mov_b32 v{vZ+1}, 0
    buffer_store_dwordx2 v[{vZ}:{vZ+1}], v{vT2}, s[{WS}:{WS+3}], s{sT3} offen
    buffer_store_dwordx2 v[{vZ}:{vZ+1}], v{vT2}, s[{WS}:{WS+3}], s{sT2} offen
    s_branch L_k1_paddone
    L_k1_padv:
    s_cmp_eq_u32 s{sMQ}, 3
    s_cbranch_scc0 L_k1_paddone
    v_lshrrev_b32 v{vT2}, 4, v{vLANE}
    s_lshl_b32 s{sT3}, s{sHG}, 2
    v_add_u32 v{vT2}, s{sT3}, v{vT2}
    v_lshlrev_b32 v{vT2}, 6, v{vT2}
    v_bfe_u32 v{vT3}, v{vLANE}, 2, 2
    s_lshl_b32 s{sT3}, s{sMT}, 2
    v_add3_u32 v{vT2}, v{vT2}, v{vT3}, s{sT3}
    v_lshlrev_b32 v{vT2}, 12, v{vT2}
    v_and_b32 v{vT3}, 3, v{vLANE}
    v_lshl_add_u32 v{vT2}, v{vT3}, 9, v{vT2}
    v_mov_b32 v{vZ}, 0x3f803f80
    v_mov_b32 v{vZ+1}, 0x3f803f80
    v_mov_b32 v{vZ+2}, 0x3f803f80
    v_mov_b32 v{vZ+3}, 0x3f803f80
    s_mov_b32 s{sT3}, {KV + 2048 + 28*16}
    buffer_store_dwordx4 v[{vZ}:{vZ+3}], v{vT2}, s[{WS}:{WS+3}], s{sT3} offen
    L_k1_paddone:
    s_waitcnt vmcnt(0)
    """)
    for i in range(8):
        a(f"v_lshl_or_b32 v{vWT+i}, v{vWT+8+i}, 16, v{vWT+i}")
    a(f"""
    buffer_store_dwordx4 v[{vWT}:{vWT+3}], v{vWSO}, s[{WS}:{WS+3}], 0 offen
    buffer_store_dwordx4 v[{vWT+4}:{vWT+7}], v{vWSO}, s[{WS}:{WS+3}], 0 offen offset:16
    s_endpgm
    """)

    a.label("L_k1_compute")
    vLA = [[9, 10], [11, 12], [13, 14]]
    vLB = [15, 16, 17]
    vPK = 18
    vEO = 20
    ACC, AF, BF = 32, 88, 104
    NV = 160
    a(f"""
    v_and_b32 v{vT0}, 15, v{vLANE}
    v_lshl_add_u32 v{vT1}, v{vT0}, 2, v{vFA}
    v_cmp_eq_u32 vcc, 0, v{vT0}
    v_mov_b32 v{vT2}, 0
    s_nop 0
    v_cndmask_b32 v{vT2}, v{vT2}, v{vONE}, vcc
    ds_write_b32 v{vT1}, v{vT2}
    v_lshrrev_b32 v{vT1}, 4, v{vLANE}
    v_and_b32 v{vT2}, 7, v{vT0}
    v_xor_b32 v{vT2}, v{vT2}, v{vT1}
    v_lshlrev_b32 v{vT2}, 4, v{vT2}
    v_lshl_add_u32 v{vT2}, v{vT0}, 7, v{vT2}
    s_lshl_b32 s{sT3}, s{sMQ}, 12
    v_add_u32 v{vLA[0][0]}, s{sT3}, v{vT2}
    v_xor_b32 v{vLA[0][1]}, 64, v{vLA[0][0]}
    v_add_u32 v{vLA[1][0]}, {2*SLOT}, v{vLA[0][0]}
    v_add_u32 v{vLA[1][1]}, {2*SLOT}, v{vLA[0][1]}
    v_add_u32 v{vLA[2][0]}, {4*SLOT}, v{vLA[0][0]}
    v_add_u32 v{vLA[2][1]}, {4*SLOT}, v{vLA[0][1]}
    v_mul_u32_u24 v{vT2}, 1920, v{vT1}
    v_lshrrev_b32 v{vT3}, 2, v{vT0}
    v_mul_u32_u24 v{vT3}, 224, v{vT3}
    v_add_u32 v{vT2}, v{vT2}, v{vT3}
    v_and_b32 v{vT3}, 3, v{vLANE}
    v_lshl_add_u32 v{vLB[0]}, v{vT3}, 3, v{vT2}
    v_add_u32 v{vLB[1]}, {2*SLOT}, v{vLB[0]}
    v_add_u32 v{vLB[2]}, {4*SLOT}, v{vLB[0]}
    s_waitcnt lgkmcnt(0)
    s_barrier
    """)
    srd(a, WS, "s32", "s33", WS_USED)
    NT = 7
    for j in range(NT): a(f"v_mov_b32 v{vEO+j}, 0")
    a(f"s_mov_b32 s{sSC}, 1.0")
    def eo_T0():
        lq = a.newlabel("k1dfto"); lend = a.newlabel("k1eod")
        a(f"""
        s_cmp_eq_u32 s{sTY}, 3
        s_cbranch_scc1 {lq}
        s_add_u32 s{sT2}, s{sTY}, 17
        """)
        for j in range(NT):
            a(f"""
            v_lshlrev_b32 v{vT2}, 2, v{vT1}
            v_add_u32 v{vT2}, {16*j}, v{vT2}
            v_mul_u32_u24 v{vT3}, 2341, v{vT2}
            v_lshrrev_b32 v{vT3}, 16, v{vT3}
            v_mul_u32_u24 v{vPK}, 28, v{vT3}
            v_sub_u32 v{vT2}, v{vT2}, v{vPK}
            v_lshlrev_b32 v{vT3}, s{sT2}, v{vT3}
            v_lshrrev_b32 v{vPK}, 3, v{vT2}
            v_lshl_add_u32 v{vT3}, v{vPK}, 9, v{vT3}
            v_and_b32 v{vT2}, 4, v{vT2}
            v_lshl_add_u32 v{vT3}, v{vT2}, 1, v{vT3}
            v_lshl_add_u32 v{vEO+j}, v{vT0}, 4, v{vT3}
            """)
        a(f"""
        s_lshl_b32 s{sOB}, s{sHG}, 8
        s_lshl_b32 s{sT3}, s{sMT}, 2
        s_add_u32 s{sOB}, s{sOB}, s{sT3}
        s_add_u32 s{sOB}, s{sOB}, s{sMQ}
        s_add_u32 s{sT3}, s{sTY}, 11
        s_lshl_b32 s{sOB}, s{sOB}, s{sT3}
        s_mul_i32 s{sT3}, s{sTY}, {KV}
        s_add_u32 s{sOB}, s{sOB}, s{sT3}
        s_cmp_eq_u32 s{sTY}, 0
        s_cselect_b32 s{sSC}, {f2u(QSCALE)}, 1.0
        s_branch {lend}
        """)
        a.label(lq)
        a(f"""
        v_mul_u32_u24 v{vT2}, {2*X1S}, v{vT1}
        v_lshl_add_u32 v{vEO}, v{vT0}, 2, v{vT2}
        v_add_u32 v{vEO+1}, {X1S}, v{vEO}
        s_mul_i32 s{sOB}, s{sHG}, {56*X1S}
        s_bfe_u32 s{sT3}, s{sMT}, 0x10001
        s_lshl_b32 s{sT3}, s{sT3}, 12
        s_add_u32 s{sOB}, s{sOB}, s{sT3}
        s_lshr_b32 s{sT3}, s{sMT}, 2
        s_lshl_b32 s{sT3}, s{sT3}, 10
        s_add_u32 s{sOB}, s{sOB}, s{sT3}
        s_and_b32 s{sT3}, s{sMT}, 1
        s_lshl_b32 s{sT3}, s{sT3}, 8
        s_add_u32 s{sOB}, s{sOB}, s{sT3}
        s_lshl_b32 s{sT3}, s{sMQ}, 6
        s_add_u32 s{sOB}, s{sOB}, s{sT3}
        s_add_u32 s{sOB}, s{sOB}, {X1F}
        """)
        a.label(lend)
    def eo_T1():
        a(f"""
        v_bfe_u32 v{vT1}, v{vLANE}, 4, 1
        v_lshlrev_b32 v{vT1}, 9, v{vT1}
        v_lshrrev_b32 v{vT2}, 5, v{vLANE}
        v_lshl_add_u32 v{vT1}, v{vT2}, 3, v{vT1}
        """)
        for j in range(NT):
            a(f"""
            v_add_u32 v{vT2}, {16*j}, v{vT0}
            v_mul_u32_u24 v{vT3}, 2341, v{vT2}
            v_lshrrev_b32 v{vT3}, 16, v{vT3}
            v_mul_u32_u24 v{vPK}, 28, v{vT3}
            v_sub_u32 v{vT2}, v{vT2}, v{vPK}
            v_lshl_add_u32 v{vT3}, v{vT3}, 18, v{vT1}
            v_lshl_add_u32 v{vEO+j}, v{vT2}, 4, v{vT3}
            """)
        a(f"""
        s_lshl_b32 s{sOB}, s{sHG}, 8
        s_lshl_b32 s{sT3}, s{sMT}, 2
        s_add_u32 s{sOB}, s{sOB}, s{sT3}
        s_add_u32 s{sOB}, s{sOB}, s{sMQ}
        s_lshl_b32 s{sOB}, s{sOB}, 12
        s_add_u32 s{sOB}, s{sOB}, {KV + 2048}
        """)
    def mainloop(T):
        def reads(t):
            c = t // 2; tt = t % 2; buf = t % 2
            slot = c % NSLOT
            bs = slot // 2; so = (slot % 2) * SLOT
            L = []
            for i in range(2):
                L.append(f"ds_read_b128 {vr(AF + buf*8 + i*4, 4)}, v{vLA[bs][tt]} offset:{so + i*2048}")
            for j in range(NT):
                for rho in range(2):
                    L.append(f"ds_read_b64_tr_b16 {vr(BF + buf*28 + j*4 + rho*2, 2)}, v{vLB[bs]} offset:{so + 16384 + tt*7680 + rho*896 + j*32}")
            return L
        def mfmas(t):
            buf = t % 2
            L = []
            for j in range(NT):
                for i in range(2):
                    d = vr(ACC + (i*7 + j)*4, 4)
                    c = "0" if t == 0 else d
                    xa = vr(AF + buf*8 + i*4, 4); wb = vr(BF + buf*28 + j*4, 4)
                    L.append(f"v_mfma_f32_16x16x32_bf16 {d}, {wb}, {xa}, {c}" if T == 0 else f"v_mfma_f32_16x16x32_bf16 {d}, {xa}, {wb}, {c}")
            return L
        def inter(M, R, pend):
            ri = 0
            for j in range(NT):
                n = (14 - 2*(j + 1)) + ri
                a(f"s_waitcnt lgkmcnt({min(n, 15)})")
                a(M[2*j])
                for _ in range(2 if j < 6 else 0):
                    if ri < len(R): a(R[ri]); ri += 1
                a(M[2*j + 1])
                if ri < len(R) and j < 6: a(R[ri]); ri += 1
            while ri < len(R): a(R[ri]); ri += 1
        spin_ge(a, vFA, vFT, sFL, 4, 4)
        for l in reads(0): a(l)
        for c in range(7):
            t = 2*c
            if c == 3: a.comment("STAMP3")
            if c == 6: a.comment("STAMP4")
            R1 = reads(t + 1)
            if c < 6: R1 = [f"ds_read_b32 v{vFT}, v{vFA} offset:{4 + 4*(c+1)}"] + R1
            ri = 0
            M0 = mfmas(t)
            for j in range(NT):
                n = (14 - 2*(j + 1)) + ri
                a(f"s_waitcnt lgkmcnt({min(n, 15)})")
                a(M0[2*j])
                for _ in range(2 if j < 6 else 0):
                    if ri < len(R1): a(R1[ri]); ri += 1
                a(M0[2*j + 1])
                if ri < len(R1) and j < 6: a(R1[ri]); ri += 1
            while ri < len(R1): a(R1[ri]); ri += 1
            M1 = mfmas(t + 1)
            def consumed():
                if c < 2:
                    a(f"""
                    s_mov_b64 exec, 1
                    ds_add_u32 v{vFA}, v{vONE} offset:{32 + 4*c}
                    s_mov_b64 exec, -1
                    """)
            if c == 6:
                inter(M1, [], 0)
            else:
                lslow = a.newlabel("slow"); ljoin = a.newlabel("join")
                a(f"""
                s_waitcnt lgkmcnt(15)
                v_readfirstlane_b32 s{sFL}, v{vFT}
                s_cmp_ge_u32 s{sFL}, 4
                s_cbranch_scc0 {lslow}
                """)
                inter(M1, reads(t + 2), 0)
                if c < 2:
                    consumed()
                    a("s_waitcnt lgkmcnt(0)")
                a(f"s_branch {ljoin}")
                a.label(lslow)
                inter(M1, [], 0)
                consumed()
                spin_ge(a, vFA, vFT, sFL, 4 + 4*(c+1), 4)
                for l in reads(t + 2): a(l)
                a.label(ljoin)
        a("s_nop 7")
    def epi_T0():
        lq = a.newlabel("k1dft")
        a(f"""
        s_cmp_eq_u32 s{sTY}, 3
        s_cbranch_scc1 {lq}
        """)
        for j in range(NT):
            for i in range(2):
                d = ACC + (i*7 + j)*4
                for r in range(4):
                    a(f"v_mul_f32 v{d+r}, s{sSC}, v{d+r}")
                a(f"v_cvt_pk_bf16_f32 v{d}, v{d}, v{d+1}")
                a(f"v_cvt_pk_bf16_f32 v{d+1}, v{d+2}, v{d+3}")
                a(f"buffer_store_dwordx2 v[{d}:{d+1}], v{vEO+j}, s[{WS}:{WS+3}], s{sOB} offen offset:{i*256}")
        a("s_endpgm")
        a.label(lq)
        for j in range(NT):
            for i in range(2):
                d = ACC + (i*7 + j)*4
                a(f"v_cvt_pk_bf16_f32 v{d}, v{d}, v{d+1}")
                a(f"v_cvt_pk_bf16_f32 v{d+1}, v{d+2}, v{d+3}")
                a(f"buffer_store_dword v{d}, v{vEO}, s[{WS}:{WS+3}], s{sOB} offen offset:{i*512}")
                a(f"buffer_store_dword v{d+1}, v{vEO+1}, s[{WS}:{WS+3}], s{sOB} offen offset:{i*512}")
            a(f"s_add_u32 s{sOB}, s{sOB}, {8*X1S}")
        a("s_endpgm")
    def epi_T1():
        for j in range(NT):
            for i in range(2):
                d = ACC + (i*7 + j)*4
                a(f"v_cvt_pk_bf16_f32 v{d}, v{d}, v{d+1}")
                a(f"v_cvt_pk_bf16_f32 v{d+1}, v{d+2}, v{d+3}")
                a(f"buffer_store_dwordx2 v[{d}:{d+1}], v{vEO+j}, s[{WS}:{WS+3}], s{sOB} offen offset:{i*1024}")
        a("s_endpgm")
    a(f"""
    s_cmp_eq_u32 s{sTY}, 2
    s_cbranch_scc1 L_k1_v
    """)
    eo_T0(); mainloop(0); epi_T0()
    a.label("L_k1_v")
    eo_T1(); mainloop(1); epi_T1()
    a.label("L_k1_end")
    a("s_endpgm")
    return a.text(), kdesc(name, NV, 64), f"; @launch kernel={name} grid=(256,1,1) block=(512,1,1) lds={K1_LDS}"
```

```python
from asmlib import *
from layout import *
from tables import FFT_A1, FFT_A2, FFT_TW1, FFT_TW2, FFT_SIZE
import struct, os
EXP = os.environ.get('K2EXP', '')
def f2u(f): return struct.unpack("<I", struct.pack("<f", f))[0]

CH = 16384
NSLOT = 8
NCH = 16
LDS_T = NSLOT * CH
LDS_Y = LDS_T + 32 * 272
LDS_R = LDS_Y + 32 * 272
LDS_C = LDS_R + 64 * 144
K2_LDS = LDS_C + 128

def gen_k2():
    a = Asm()
    name = "k2_kernel"
    a.lines.append(khead(name))
    WS, TB, XS, GW = 4, 8, 12, 16
    sW, sH, sQB, sT0, sT1, sT2, sT3 = 30, 31, 32, 33, 34, 35, 36
    sKVO, sM0, sRT, sKH = 37, 38, 39, 40
    sCNT = 41
    vLANE = 1
    vT0, vT1, vT2, vT3 = 2, 3, 4, 5
    a(f"""
    s_cmp_ge_u32 s2, 256
    s_cbranch_scc1 L_k2_end
    s_load_dwordx2 s[24:25], s[0:1], 72
    s_load_dwordx2 s[26:27], s[0:1], 0
    s_load_dwordx2 s[28:29], s[0:1], 48
    s_getpc_b64 s[20:21]
    s_add_u32 s20, s20, tbl_fft@rel32@lo+4
    s_addc_u32 s21, s21, tbl_fft@rel32@hi+12
    v_and_b32 v{vLANE}, 63, v0
    v_lshrrev_b32 v{vT0}, 6, v0
    s_and_b32 s{sT0}, s2, 7
    s_lshl_b32 s{sT0}, s{sT0}, 1
    v_readfirstlane_b32 s{sW}, v{vT0}
    s_bfe_u32 s{sT1}, s2, 0x10003
    s_add_u32 s{sH}, s{sT0}, s{sT1}
    s_lshr_b32 s{sQB}, s2, 4
    s_waitcnt lgkmcnt(0)
    """)
    srd(a, WS, "s24", "s25", WS_USED)
    srd(a, TB, "s20", "s21", FFT_SIZE)
    srd(a, XS, "s26", "s27", 2048*896)
    srd(a, GW, "s28", "s29", 896)
    a(f"""
    s_cmp_ge_u32 s{sW}, 8
    s_cbranch_scc1 L_k2_fft
    """)
    vDMA, vK, vV, vCA = 6, 7, 8, 9
    vONE, vFL = 14, 15
    sKVB, sFL, sC, sSLOT, sQP = 44, 45, 46, 47, 48
    Q, KF, VF, S, P, O = 16, 32, 48, 64, 96, 112
    QLDS = 7 * CH
    a(f"""
    v_lshlrev_b32 v{vT0}, 4, v{vLANE}
    s_lshl_b32 s{sM0}, s{sW}, 11
    v_add_u32 v{vDMA}, s{sM0}, v{vT0}
    s_lshl_b32 s{sKVO}, s{sH}, 18
    s_add_u32 s{sKVO}, s{sKVO}, {KV}
    s_mov_b32 s{sSLOT}, s{sM0}
    """)
    def dma(tag):
        a(f"s_mov_b32 m0, s{sSLOT}")
        a(f"s_add_u32 s{sSLOT}, s{sSLOT}, {CH}")
        a.vmem(f"buffer_load_dwordx4 v{vDMA}, s[{WS}:{WS+3}], s{sKVO} offen lds", tag)
        a.vmem(f"buffer_load_dwordx4 v{vDMA}, s[{WS}:{WS+3}], s{sKVO} offen offset:1024 lds", tag)
        a(f"s_add_u32 s{sKVO}, s{sKVO}, {CH}")
        a(f"s_and_b32 s{sSLOT}, s{sSLOT}, {NSLOT*CH - 1}")
    dma("c0")
    a(f"""
    s_lshl_b32 s{sT1}, s{sH}, 6
    s_lshl_b32 s{sT0}, s{sQB}, 2
    s_add_u32 s{sT1}, s{sT1}, s{sT0}
    s_lshl_b32 s{sT1}, s{sT1}, 11
    s_lshl_b32 s{sT2}, s{sW}, 10
    s_add_u32 s{sT1}, s{sT1}, s{sT2}
    s_add_u32 m0, s{sT2}, {QLDS}
    s_and_b32 s{sQP}, s{sW}, 1
    """)
    a.vmem(f"buffer_load_dwordx4 v{vT0}, s[{WS}:{WS+3}], s{sT1} offen lds", "q")
    dma("c1")
    a("s_barrier")
    dma("c2"); dma("c3")
    a(f"""
    s_lshr_b32 s{sKH}, s{sW}, 1
    s_lshl_b32 s{sT1}, s{sKH}, 12
    v_add_u32 v{vV}, s{sT1}, v{vT0}
    v_add_u32 v{vK}, {2*CH}, v{vV}
    v_mov_b32 v{vCA}, {LDS_C}
    v_mov_b32 v{vONE}, 1
    v_and_b32 v{vT2}, 31, v{vLANE}
    v_lshlrev_b32 v{vT1}, 2, v{vT2}
    v_add_u32 v{vT1}, {LDS_C}, v{vT1}
    v_mov_b32 v{vT2}, 0
    ds_write_b32 v{vT1}, v{vT2}
    s_lshl_b32 s{sT1}, s{sQP}, 12
    s_add_u32 s{sT1}, s{sT1}, {QLDS}
    v_add_u32 v{vT1}, s{sT1}, v{vT0}
    s_lshl_b32 s{sRT}, s{sQB}, 2
    s_lshl_b32 s{sT1}, s{sQP}, 1
    s_add_u32 s{sRT}, s{sRT}, s{sT1}
    """)
    for r in range(32): a(f"v_mov_b32 v{O+r}, 0")
    for r in range(8): a(f"v_mov_b32 v{P+8+r}, 0")
    for r in range(8): a(f"v_mov_b32 v{VF+8+r}, 0")
    def rd2(dst, base, off):
        for f in range(2):
            a(f"ds_read_b128 {vr(dst + f*4, 4)}, v{base} offset:{off + f*1024}")
    def qk(sb, kb, qb, f):
        d = vr(S + sb*16, 16)
        c = "0" if f == 0 else d
        return f"v_mfma_f32_32x32x16_bf16 {d}, {vr(KF + kb*8 + f*4, 4)}, {vr(Q + qb*8 + f*4, 4)}, {c}"
    def pv(ob, vb, pb, f):
        d = vr(O + ob*16, 16)
        return f"v_mfma_f32_32x32x16_bf16 {d}, {vr(VF + vb*8 + f*4, 4)}, {vr(P + pb*8 + f*4, 4)}, {d}"
    a.wait_vm(["c0", "q", "c1"], "lgkmcnt(0)")
    a("s_barrier")
    rd2(KF, vV, 0)
    rd2(Q, vT1, 0); rd2(Q + 8, vT1, 2048)
    dma("c4"); dma("c5")
    a(f"""
    s_mov_b32 s{sC}, 0
    s_waitcnt lgkmcnt(0)
    """)
    a(qk(0, 0, 0, 0)); a(qk(0, 0, 0, 1))
    a("s_nop 7")
    a.vm = []; a.lg = []
    def trip(kind):
        lab = f"L_k2_loop{kind}"
        a(".p2align 6")
        a.label(lab)
        if "trips" in EXP and kind == 0:
            for T, st in ((0, 0), (1, 2), (2, 3), (4, 4)):
                l = a.newlabel("st")
                a(f"s_cmp_lg_u32 s{sC}, {T}")
                a(f"s_cbranch_scc1 {l}")
                a.label(l)
        for it in range(4):
            par = it % 2
            if it == 0:
                rd2(KF + 8, vV, CH); rd2(VF, vV, 2048)
            elif it == 2:
                a(f"""
                s_cmp_ge_u32 s{sFL}, 8
                s_cbranch_scc0 L_k2_spin{kind}
                L_k2_flagok{kind}:
                """)
                rd2(KF, vK, 0); rd2(VF + 8, vV, CH + 2048)
            elif it == 1:
                a("s_waitcnt lgkmcnt(1)")
            else:
                a("s_waitcnt lgkmcnt(0)")
            s0 = S + par*16; p0 = P + par*8
            e = [f"v_exp_f32 v{s0+k}, v{s0+k}" for k in range(16)]
            cv = [f"v_cvt_pk_bf16_f32 v{p0+k}, v{s0+2*k}, v{s0+2*k+1}" for k in range(8)]
            kb = [0, 1, 1, 0][it]; vb = [1, 0, 0, 1][it]
            m = [qk(1-par, kb, 1-par, 0), pv(1-par, vb, 1-par, 0), qk(1-par, kb, 1-par, 1), pv(1-par, vb, 1-par, 1)]
            for g in range(4):
                a(e[4*g])
                a(m[g])
                a(e[4*g+1]); a(e[4*g+2]); a(e[4*g+3])
                a(cv[2*g]); a(cv[2*g+1])
                if it == 0 and g == 3:
                    a(f"""
                    s_waitcnt vmcnt({4 if kind == 0 else 0})
                    s_mov_b64 exec, 1
                    ds_add_u32 v{vCA}, v{vONE}
                    s_mov_b64 exec, -1
                    """)
                if it == 1 and g == 1:
                    a(f"ds_read_b32 v{vFL}, v{vCA}")
                if it == 1 and g == 3:
                    a(f"""
                    s_waitcnt lgkmcnt(0)
                    v_readfirstlane_b32 s{sFL}, v{vFL}
                    """)
                if kind == 0 and it >= 2 and g == 1:
                    dma("x")
                if it == 3 and g == 2:
                    a(f"""
                    v_mov_b32 v{vV}, v{vK}
                    v_add_u32 v{vK}, {2*CH}, v{vK}
                    v_and_b32 v{vK}, {NSLOT*CH - 1}, v{vK}
                    v_add_u32 v{vCA}, 4, v{vCA}
                    s_add_u32 s{sC}, s{sC}, 1
                    """)
        a(f"""
        s_cmp_lt_u32 s{sC}, {5 if kind == 0 else 8}
        s_cbranch_scc1 {lab}
        """)
    def spin(kind):
        a(f"""
        L_k2_spin{kind}:
        s_sleep 1
        ds_read_b32 v{vFL}, v{vCA}
        s_waitcnt lgkmcnt(0)
        v_readfirstlane_b32 s{sFL}, v{vFL}
        s_cmp_ge_u32 s{sFL}, 8
        s_cbranch_scc0 L_k2_spin{kind}
        s_branch L_k2_flagok{kind}
        """)
    trip(0)
    trip(1)
    a("s_branch L_k2_loopdone")
    spin(0); spin(1)
    a.label("L_k2_loopdone")
    a.vm = []; a.lg = []
    a(pv(1, 1, 1, 0)); a(pv(1, 1, 1, 1))
    a(f"""
    s_mul_i32 s{sT0}, s{sQP}, {6*4096}
    v_lshlrev_b32 v{vT0}, 4, v{vLANE}
    v_add_u32 v{vT0}, s{sT0}, v{vT0}
    s_lshl_b32 s{sT0}, s{sQP}, 3
    s_add_u32 s{sT0}, s{sT0}, {LDS_C + 112}
    v_mov_b32 v{vCA}, s{sT0}
    s_cmp_ge_u32 s{sKH}, 2
    s_cbranch_scc1 L_k2_send2
    s_cmp_eq_u32 s{sKH}, 1
    s_cbranch_scc1 L_k2_own1
    """)
    def send(X, base, off):
        for r in range(4):
            a(f"ds_write_b128 v{base}, {vr(O + X*16 + 4*r, 4)} offset:{off + X*3*4096 + r*1024}")
    def signal(Xs):
        a("s_waitcnt lgkmcnt(0)")
        a("s_mov_b64 exec, 1")
        for X in Xs: a(f"ds_add_u32 v{vCA}, v{vONE} offset:{4*X}")
        a("s_mov_b64 exec, -1")
    vOO = 10
    def own(X):
        a("s_nop 7")
        send(1 - X, vT0, 0)
        signal([1 - X])
        a(f"""
        v_lshrrev_b32 v{vT1}, 5, v{vLANE}
        s_mul_i32 s{sT1}, s{sH}, 7
        v_add_u32 v{vT1}, s{sT1}, v{vT1}
        v_and_b32 v{vT2}, 1, v{vT1}
        v_lshrrev_b32 v{vT1}, 1, v{vT1}
        v_lshlrev_b32 v{vT1}, 9, v{vT1}
        v_lshl_add_u32 v{vT1}, v{vT2}, 3, v{vT1}
        v_and_b32 v{vT2}, 31, v{vLANE}
        v_lshl_add_u32 v{vOO}, v{vT2}, 4, v{vT1}
        v_mov_b32 v{vT2}, 0x7fffffff
        v_cmp_gt_u32 vcc, 32, v{vLANE}
        s_add_u32 s{sRT}, s{sRT}, {X}
        s_mul_i32 s{sT1}, s{sRT}, 28672
        s_add_u32 s{sT1}, s{sT1}, {OF}
        v_cndmask_b32 v{vOO+1}, v{vT2}, v{vOO}, vcc
        """)
        if X == 1:
            for r in range(8): a(f"v_mov_b32 v{Q+r}, v{Q+8+r}")
        a(f"""
        L_k2_pairwait{X}:
        ds_read_b32 v{vFL}, v{vCA} offset:{4*X}
        s_waitcnt lgkmcnt(0)
        v_readfirstlane_b32 s{sFL}, v{vFL}
        s_cmp_eq_u32 s{sFL}, 3
        s_cbranch_scc1 L_k2_pairok{X}
        s_sleep 1
        s_branch L_k2_pairwait{X}
        L_k2_pairok{X}:
        """)
        TMP = KF
        for n in range(3):
            for r in range(4):
                a(f"ds_read_b128 {vr(TMP + n*16 + 4*r, 4)}, v{vT0} offset:{(X*3 + n)*4096 + r*1024}")
        a("s_waitcnt lgkmcnt(8)")
        for r in range(16): a(f"v_add_f32 v{O+r}, v{O+X*16+r}, v{TMP+r}")
        a("s_waitcnt lgkmcnt(0)")
        for r in range(16): a(f"v_add_f32 v{TMP+16+r}, v{TMP+16+r}, v{TMP+32+r}")
        for r in range(16): a(f"v_add_f32 v{O+r}, v{O+r}, v{TMP+16+r}")
        a(f"s_mov_b32 s{sKH}, 0")
    a.label("L_k2_own0")
    own(0)
    a("s_branch L_k2_final")
    a.label("L_k2_send2")
    a(f"""
    s_sub_u32 s{sT0}, s{sKH}, 1
    s_lshl_b32 s{sT0}, s{sT0}, 12
    v_add_u32 v{vT0}, s{sT0}, v{vT0}
    s_nop 7
    """)
    send(0, vT0, 0); send(1, vT0, 0)
    signal([0, 1])
    a("s_waitcnt lgkmcnt(0)")
    a("s_endpgm")
    a.label("L_k2_own1")
    own(1)
    a.label("L_k2_final")
    vL, vL2, vC = 14, 15, vT3
    a(f"""
    v_mov_b32 v{vL}, v{O+12}
    v_mov_b32 v{vL2}, v{O+12}
    v_mov_b32 v{vC}, 0
    s_nop 1
    v_permlane32_swap_b32 v{vL}, v{vL2}
    """)
    for r in range(12):
        a(f"v_fma_f32 v{vC}, v{O+r}, 0, v{vC}")
    a(f"""
    v_mov_b32 v{vT2}, 0
    v_fma_f32 v{vT2}, v{O+12}, 0, v{vT2}
    v_fma_f32 v{vT2}, v{O+13}, 0, v{vT2}
    v_fma_f32 v{vT2}, v{O+14}, 0, v{vT2}
    v_fma_f32 v{vT2}, v{O+15}, 0, v{vT2}
    v_cmp_gt_u32 vcc, 32, v{vLANE}
    v_rcp_f32 v{vL}, v{vL2}
    s_nop 0
    v_cndmask_b32 v{vT2}, 0, v{vT2}, vcc
    v_add_f32 v{vC}, v{vC}, v{vT2}
    v_add_f32 v{vC}, v{vC}, v{vL2}
    s_cmp_eq_u32 s{sKH}, 2
    s_cbranch_scc1 L_k2_store
    v_mov_b32 v{vT2}, {f2u(2.0**-24)}
    v_cmp_ngt_f32 vcc, v{vC}, v{vT2}
    v_mov_b32 v{vT2}, {f2u(2.0**40)}
    v_cmp_nlt_f32 s[{sT2}:{sT2+1}], v{vC}, v{vT2}
    """.replace(f"s[{sT2}:{sT2+1}]", "s[42:43]"))
    a(f"""
    s_or_b64 vcc, vcc, s[42:43]
    s_cbranch_vccnz L_k2_fallback
    """)
    a.label("L_k2_store")
    for r in range(16):
        a(f"v_mul_f32 v{O+r}, v{O+r}, v{vL}")
    for qd in range(4):
        a(f"v_cvt_pk_bf16_f32 v{O+4*qd}, v{O+4*qd}, v{O+4*qd+1}")
        a(f"v_cvt_pk_bf16_f32 v{O+4*qd+1}, v{O+4*qd+2}, v{O+4*qd+3}")
        vo = vOO + 1 if qd == 3 else vOO
        a(f"buffer_store_dwordx2 {vr(O+4*qd, 2)}, v{vo}, s[{WS}:{WS+3}], s{sT1} offen offset:{qd*512}")
    a("s_endpgm")
    a.label("L_k2_fallback")
    vM, vMN, vAL = 6, 7, 8
    a(f"""
    s_mov_b32 s{sKH}, 2
    s_lshl_b32 s{sKVO}, s{sH}, 18
    s_add_u32 s{sKVO}, s{sKVO}, {KV}
    v_lshlrev_b32 v{vT0}, 4, v{vLANE}
    v_mov_b32 v{vM}, 0xff800000
    s_mov_b32 s{sCNT}, 0
    """)
    for r in range(16): a(f"v_mov_b32 v{O+r}, 0")
    a.label("L_k2_fbloop")
    for f in range(4):
        dst = (KF + f*4) if f < 2 else (VF + (f-2)*4)
        a(f"buffer_load_dwordx4 {vr(dst,4)}, v{vT0}, s[{WS}:{WS+3}], s{sKVO} offen offset:{f*1024}")
    a(f"""
    s_waitcnt vmcnt(0)
    v_mfma_f32_32x32x16_bf16 {vr(S,16)}, {vr(KF,4)}, {vr(Q,4)}, 0
    v_mfma_f32_32x32x16_bf16 {vr(S,16)}, {vr(KF+4,4)}, {vr(Q+4,4)}, {vr(S,16)}
    s_nop 15
    s_nop 3
    v_mov_b32 v{vMN}, v{vM}
    """)
    for r in range(0, 16, 2):
        a(f"v_max3_f32 v{vMN}, v{S+r}, v{S+r+1}, v{vMN}")
    a(f"""
    v_mov_b32 v{vT1}, v{vMN}
    v_mov_b32 v{vT2}, v{vMN}
    s_nop 1
    v_permlane32_swap_b32 v{vT1}, v{vT2}
    s_nop 1
    v_max3_f32 v{vMN}, v{vMN}, v{vT1}, v{vT2}
    v_sub_f32 v{vAL}, v{vM}, v{vMN}
    v_exp_f32 v{vAL}, v{vAL}
    v_mov_b32 v{vM}, v{vMN}
    """)
    for r in range(16):
        a(f"v_sub_f32 v{S+r}, v{S+r}, v{vMN}")
        a(f"v_exp_f32 v{S+r}, v{S+r}")
    for r in range(16):
        a(f"v_mul_f32 v{O+r}, v{O+r}, v{vAL}")
    for k in range(8):
        a(f"v_cvt_pk_bf16_f32 v{P+k}, v{S+2*k}, v{S+2*k+1}")
    a(f"""
    s_nop 1
    v_mfma_f32_32x32x16_bf16 {vr(O,16)}, {vr(VF,4)}, {vr(P,4)}, {vr(O,16)}
    v_mfma_f32_32x32x16_bf16 {vr(O,16)}, {vr(VF+4,4)}, {vr(P+4,4)}, {vr(O,16)}
    s_add_u32 s{sKVO}, s{sKVO}, 4096
    s_add_u32 s{sCNT}, s{sCNT}, 1
    s_nop 15
    s_nop 3
    s_cmp_lt_u32 s{sCNT}, 64
    s_cbranch_scc1 L_k2_fbloop
    s_branch L_k2_final
    """)

    a.label("L_k2_fft")
    a.vm = []; a.lg = []
    sFW, sK, sSL, sMT1, sNT2 = 37, 38, 39, 40, 41
    B1, A1, TW1, TW2, A2, WR, ACC, B2 = 16, 32, 48, 64, 80, 112, 120, 136
    PK = 16
    vL16, vA, vB, vC2 = 6, 7, 8, 9
    def fsync(n):
        lsp = a.newlabel("k2fs"); lok = a.newlabel("k2fo")
        a(f"""
        s_waitcnt lgkmcnt(0)
        v_mov_b32 v{vA}, {LDS_C}
        v_mov_b32 v{vB}, 1
        s_mov_b64 exec, 1
        ds_add_u32 v{vA}, v{vB} offset:{96 + 4*n}
        s_mov_b64 exec, -1
        """)
        a.label(lsp)
        a(f"""
        ds_read_b32 v{vB}, v{vA} offset:{96 + 4*n}
        s_waitcnt lgkmcnt(0)
        v_readfirstlane_b32 s45, v{vB}
        s_cmp_ge_u32 s45, 4
        s_cbranch_scc1 {lok}
        s_sleep 1
        s_branch {lsp}
        """)
        a.label(lok)
    a(f"""
    {'s_setprio 3' if 'prio' in EXP else ''}
    s_sub_u32 s{sFW}, s{sW}, 8
    v_lshlrev_b32 v{vL16}, 4, v{vLANE}
    s_barrier
    s_barrier
    {"s_endpgm" if "nofft" in EXP else ""}
    s_cmp_ge_u32 s2, 225
    s_cbranch_scc1 L_k2_gate
    s_lshr_b32 s{sMT1}, s{sFW}, 1
    s_and_b32 s{sNT2}, s{sFW}, 1
    s_cmp_eq_u32 s2, 224
    s_cselect_b32 s{sSL}, 0, s2
    s_mul_i32 s{sT0}, s{sSL}, {X1S}
    s_lshl_b32 s{sT1}, s{sNT2}, 12
    s_add_u32 s{sT0}, s{sT0}, s{sT1}
    s_add_u32 s{sT0}, s{sT0}, {X1F}
    s_lshl_b32 s{sT1}, s{sMT1}, 12
    s_lshl_b32 s{sT2}, s{sFW}, 12
    s_add_u32 s{sT3}, s{sT2}, {FFT_TW1}
    """)
    for ks in range(4):
        a.vmem(f"buffer_load_dwordx4 {vr(B1+4*ks,4)}, v{vL16}, s[{WS}:{WS+3}], s{sT0} offen offset:{ks*1024}", "b1")
    for ks in range(4):
        a.vmem(f"buffer_load_dwordx4 {vr(A1+4*ks,4)}, v{vL16}, s[{TB}:{TB+3}], s{sT1} offen offset:{ks*1024}", "a1")
    for i in range(4):
        a.vmem(f"buffer_load_dwordx4 {vr(TW1+4*i,4)}, v{vL16}, s[{TB}:{TB+3}], s{sT3} offen offset:{i*1024}", "tw1")
    a(f"""
    s_lshl_b32 s{sT1}, s{sFW}, 13
    s_add_u32 s{sT1}, s{sT1}, {FFT_A2}
    s_add_u32 s{sT0}, s{sT1}, 4096
    s_add_u32 s{sT3}, s{sT2}, {FFT_TW2}
    """)
    for ks in range(8):
        so = sT1 if ks < 4 else sT0
        a.vmem(f"buffer_load_dwordx4 {vr(A2+4*ks,4)}, v{vL16}, s[{TB}:{TB+3}], s{so} offen offset:{(ks%4)*1024}", "a2")
    a(f"""
    v_and_b32 v{vT0}, 31, v{vLANE}
    v_lshrrev_b32 v{vT1}, 5, v{vLANE}
    v_lshlrev_b32 v{vT2}, 10, v{vT1}
    v_lshl_add_u32 v{vT2}, v{vT0}, 2, v{vT2}
    s_mul_i32 s{sT0}, s2, {WFS}
    s_lshl_b32 s{sT1}, s{sFW}, 11
    s_add_u32 s{sT0}, s{sT0}, s{sT1}
    s_add_u32 s{sT0}, s{sT0}, {WF}
    """)
    for p in range(8):
        a.vmem(f"buffer_load_dword v{WR+p}, v{vT2}, s[{WS}:{WS+3}], s{sT0} offen offset:{p*128}", "w")
    for i in range(4):
        a.vmem(f"buffer_load_dwordx4 {vr(TW2+4*i,4)}, v{vL16}, s[{TB}:{TB+3}], s{sT3} offen offset:{i*1024}", "tw2")
    vW1, vR2, vWY, vW3, vR4, vZO = 10, 11, 12, 13, 14, 15
    a(f"""
    v_mul_u32_u24 v{vT2}, {8*272}, v{vT1}
    v_lshl_add_u32 v{vT2}, v{vT0}, 2, v{vT2}
    s_mul_i32 s{sT0}, s{sMT1}, {16*272}
    s_lshl_b32 s{sT1}, s{sNT2}, 7
    s_add_u32 s{sT0}, s{sT0}, s{sT1}
    s_add_u32 s{sT0}, s{sT0}, {LDS_T}
    v_add_u32 v{vW1}, s{sT0}, v{vT2}
    v_mul_u32_u24 v{vT2}, 272, v{vT0}
    v_lshl_add_u32 v{vT3}, v{vT1}, 4, v{vT2}
    v_add_u32 v{vR2}, {LDS_T}, v{vT3}
    v_lshl_add_u32 v{vT3}, v{vT1}, 5, v{vT2}
    s_lshl_b32 s{sT0}, s{sFW}, 6
    s_add_u32 s{sT0}, s{sT0}, {LDS_Y}
    v_add_u32 v{vWY}, s{sT0}, v{vT3}
    v_mul_u32_u24 v{vT2}, {8*144}, v{vT1}
    v_lshl_add_u32 v{vT2}, v{vT0}, 2, v{vT2}
    s_mul_i32 s{sT0}, s{sFW}, {16*144}
    s_add_u32 s{sT0}, s{sT0}, {LDS_R}
    v_add_u32 v{vW3}, s{sT0}, v{vT2}
    v_mul_u32_u24 v{vT2}, 144, v{vT0}
    v_lshl_add_u32 v{vT2}, v{vT1}, 4, v{vT2}
    s_mul_i32 s{sT0}, s{sNT2}, {32*144}
    s_add_u32 s{sT0}, s{sT0}, {LDS_R}
    v_add_u32 v{vR4}, s{sT0}, v{vT2}
    v_lshlrev_b32 v{vT2}, 4, v{vT0}
    v_lshl_add_u32 v{vZO}, v{vT1}, 10, v{vT2}
    """)
    a.wait_vm(["b1", "a1"])
    a(f"""
    s_cmp_eq_u32 s2, 0
    s_cbranch_scc1 L_k2_sp0
    s_cmp_eq_u32 s2, 224
    s_cbranch_scc0 L_k2_spdone
    """)
    for r in range(16): a(f"v_lshrrev_b32 v{B1+r}, 16, v{B1+r}")
    a("s_branch L_k2_spdone")
    a.label("L_k2_sp0")
    for r in range(16): a(f"v_and_b32 v{B1+r}, 0xffff, v{B1+r}")
    a.label("L_k2_spdone")
    a("s_nop 1")
    def mm(A, B, n):
        for ks in range(n):
            c = "0" if ks == 0 else vr(ACC, 16)
            a(f"v_mfma_f32_32x32x16_bf16 {vr(ACC,16)}, {vr(A+4*ks,4)}, {vr(B+4*ks,4)}, {c}")
    def cmul_tw(TW):
        for p in range(8):
            ar, ai, tr, ti = ACC+2*p, ACC+2*p+1, TW+2*p, TW+2*p+1
            a(f"""
            v_mul_f32 v{vT2}, v{ar}, v{tr}
            v_mul_f32 v{vT3}, v{ar}, v{ti}
            v_fma_f32 v{vT2}, -v{ai}, v{ti}, v{vT2}
            v_fmac_f32 v{vT3}, v{ai}, v{tr}
            v_cvt_pk_bf16_f32 v{PK+p}, v{vT2}, v{vT3}
            """)
    mm(A1, B1, 4)
    a.wait_vm("tw1")
    a("s_nop 15")
    cmul_tw(TW1)
    for p in range(8):
        a(f"ds_write_b32 v{vW1}, v{PK+p} offset:{p*272}")
    fsync(0)
    for ks in range(8):
        a.lds(f"ds_read_b128 {vr(B2+4*ks,4)}, v{vR2} offset:{ks*32}", f"b2_{ks}")
    a.wait_vm("a2")
    for ks in range(8):
        a.wait_lg(f"b2_{ks}")
        c = "0" if ks == 0 else vr(ACC, 16)
        a(f"v_mfma_f32_32x32x16_bf16 {vr(ACC,16)}, {vr(A2+4*ks,4)}, {vr(B2+4*ks,4)}, {c}")
    a.wait_vm("w")
    for p in range(8):
        a(f"v_lshlrev_b32 v{TW1+2*p}, 16, v{WR+p}")
        a(f"v_and_b32 v{TW1+2*p+1}, 0xffff0000, v{WR+p}")
    for p in range(8):
        ar, ai, tr, ti = ACC+2*p, ACC+2*p+1, TW1+2*p, TW1+2*p+1
        a(f"""
        v_mul_f32 v{vT2}, v{ar}, v{tr}
        v_mul_f32 v{vT3}, v{ar}, v{ti}
        v_fma_f32 v{vT2}, -v{ai}, v{ti}, v{vT2}
        v_fmac_f32 v{vT3}, v{ai}, v{tr}
        v_cvt_pk_bf16_f32 v{PK+p}, v{vT2}, -v{vT3}
        """)
    a(f"""
    ds_write_b128 v{vWY}, {vr(PK,4)}
    ds_write_b128 v{vWY}, {vr(PK+4,4)} offset:16
    """)
    fsync(1)
    for ks in range(8):
        a.lds(f"ds_read_b128 {vr(B2+4*ks,4)}, v{vR2} offset:{ks*32 + (LDS_Y-LDS_T)}", f"b3_{ks}")
    for ks in range(8):
        a.wait_lg(f"b3_{ks}")
        c = "0" if ks == 0 else vr(ACC, 16)
        a(f"v_mfma_f32_32x32x16_bf16 {vr(ACC,16)}, {vr(A2+4*ks,4)}, {vr(B2+4*ks,4)}, {c}")
    a.wait_vm("tw2")
    a("s_nop 15")
    cmul_tw(TW2)
    for p in range(8):
        a(f"ds_write_b32 v{vW3}, v{PK+p} offset:{p*144}")
    fsync(2)
    for ks in range(4):
        a.lds(f"ds_read_b128 {vr(B2+4*ks,4)}, v{vR4} offset:{ks*32}", f"b4_{ks}")
    for ks in range(4):
        a.wait_lg(f"b4_{ks}")
        c = "0" if ks == 0 else vr(ACC, 16)
        a(f"v_mfma_f32_32x32x16_bf16 {vr(ACC,16)}, {vr(A1+4*ks,4)}, {vr(B2+4*ks,4)}, {c}")
    a(f"""
    s_mul_i32 s{sT0}, s2, {2*ZTS}
    s_cmp_eq_u32 s2, 224
    s_cselect_b32 s{sT0}, {ZTS}, s{sT0}
    s_lshl_b32 s{sT1}, s{sNT2}, 9
    s_add_u32 s{sT0}, s{sT0}, s{sT1}
    s_lshl_b32 s{sT1}, s{sMT1}, 11
    s_add_u32 s{sT0}, s{sT0}, s{sT1}
    s_add_u32 s{sT0}, s{sT0}, {ZT}
    s_add_u32 s{sT1}, s{sT0}, {ZTS}
    s_nop 7
    """)
    for q in range(4):
        a(f"v_cvt_pk_bf16_f32 v{PK+q}, v{ACC+4*q}, v{ACC+4*q+2}")
        a(f"v_cvt_pk_bf16_f32 v{PK+4+q}, -v{ACC+4*q+1}, -v{ACC+4*q+3}")
    a(f"""
    buffer_store_dwordx4 {vr(PK,4)}, v{vZO}, s[{WS}:{WS+3}], s{sT0} offen
    s_cmp_eq_u32 s{sSL}, 0
    s_cbranch_scc1 L_k2_gate
    buffer_store_dwordx4 {vr(PK+4,4)}, v{vZO}, s[{WS}:{WS+3}], s{sT1} offen
    """)
    a.label("L_k2_gate")
    XA, XB, GWr = 32, 36, 40
    U = 48
    a(f"""
    s_lshl_b32 s{sT0}, s2, 3
    s_lshl_b32 s{sT1}, s{sFW}, 1
    s_add_u32 s{sT0}, s{sT0}, s{sT1}
    s_and_b32 s{sT1}, s{sT0}, 7
    s_lshl_b32 s{sT1}, s{sT1}, 6
    s_bfe_u32 s{sT2}, s{sT0}, 0x60003
    s_add_u32 s{sT1}, s{sT1}, s{sT2}
    s_lshr_b32 s{sT2}, s{sT0}, 9
    s_lshl_b32 s{sT2}, s{sT2}, 9
    s_add_u32 s{sT1}, s{sT1}, s{sT2}
    s_mul_i32 s{sT1}, s{sT1}, 896
    s_add_u32 s{sT2}, s{sT1}, {64*896}
    v_mov_b32 v{vT0}, 0x7fffffff
    v_cmp_gt_u32 vcc, 56, v{vLANE}
    s_nop 1
    v_cndmask_b32 v{vT0}, v{vT0}, v{vL16}, vcc
    buffer_load_dwordx4 {vr(XA,4)}, v{vT0}, s[{XS}:{XS+3}], s{sT1} offen
    buffer_load_dwordx4 {vr(XB,4)}, v{vT0}, s[{XS}:{XS+3}], s{sT2} offen
    buffer_load_dwordx4 {vr(GWr,4)}, v{vT0}, s[{GW}:{GW+3}], 0 offen
    s_waitcnt vmcnt(0)
    """)
    for r in range(4):
        a(f"v_lshlrev_b32 v{U+2*r}, 16, v{GWr+r}")
        a(f"v_and_b32 v{U+2*r+1}, 0xffff0000, v{GWr+r}")
    for X, acc in ((XA, vT2), (XB, vT3)):
        for r in range(4):
            a(f"""
            v_lshlrev_b32 v{vA}, 16, v{X+r}
            v_and_b32 v{vB}, 0xffff0000, v{X+r}
            v_mul_f32 v{vA}, v{vA}, v{U+2*r}
            v_mul_f32 v{vB}, v{vB}, v{U+2*r+1}
            v_cvt_pk_bf16_f32 v{vA}, v{vA}, v{vB}
            v_lshlrev_b32 v{vB}, 16, v{vA}
            v_and_b32 v{vA}, 0xffff0000, v{vA}
            """)
            if r == 0: a(f"v_add_f32 v{acc}, v{vA}, v{vB}")
            else:
                a(f"v_add_f32 v{acc}, v{acc}, v{vA}")
                a(f"v_add_f32 v{acc}, v{acc}, v{vB}")
    for dpp in ("row_shr:1 bound_ctrl:0", "row_shr:2 bound_ctrl:0", "row_shr:4 bound_ctrl:0", "row_shr:8 bound_ctrl:0", "row_bcast:15 row_mask:0xa", "row_bcast:31 row_mask:0xc"):
        a("s_nop 1")
        a(f"v_add_f32_dpp v{vT2}, v{vT2}, v{vT2} {dpp}")
        a(f"v_add_f32_dpp v{vT3}, v{vT3}, v{vT3} {dpp}")
    a(f"""
    v_cvt_pk_bf16_f32 v{vA}, v{vT2}, v{vT3}
    v_lshlrev_b32 v{vT2}, 16, v{vA}
    v_and_b32 v{vT3}, 0xffff0000, v{vA}
    v_mul_f32 v{vT2}, {f2u(-1.4426950408889634)}, v{vT2}
    v_mul_f32 v{vT3}, {f2u(-1.4426950408889634)}, v{vT3}
    v_exp_f32 v{vT2}, v{vT2}
    v_exp_f32 v{vT3}, v{vT3}
    s_nop 0
    v_add_f32 v{vT2}, 1.0, v{vT2}
    v_add_f32 v{vT3}, 1.0, v{vT3}
    v_rcp_f32 v{vT2}, v{vT2}
    v_rcp_f32 v{vT3}, v{vT3}
    s_nop 0
    v_cvt_pk_bf16_f32 v{vA}, v{vT2}, v{vT3}
    v_lshlrev_b32 v{U}, 16, v{vA}
    v_and_b32 v{U+2}, 0xffff0000, v{vA}
    v_sub_f32 v{vT2}, 1.0, v{U}
    v_sub_f32 v{vT3}, 1.0, v{U+2}
    v_cvt_pk_bf16_f32 v{vA}, v{vT2}, v{vT3}
    v_lshlrev_b32 v{U+1}, 16, v{vA}
    v_and_b32 v{U+3}, 0xffff0000, v{vA}
    v_mov_b32 v{vT0}, 0x7fffffff
    v_cmp_eq_u32 vcc, 63, v{vLANE}
    s_lshl_b32 s{sT0}, s{sT0}, 3
    s_add_u32 s{sT0}, s{sT0}, {GT}
    v_cndmask_b32 v{vT0}, v{vT0}, 0, vcc
    buffer_store_dwordx4 {vr(U,4)}, v{vT0}, s[{WS}:{WS+3}], s{sT0} offen
    """)
    a("s_endpgm")
    a.label("L_k2_end")
    a("s_endpgm")
    return a.text(), kdesc(name, 168, 64), f"; @launch kernel={name} grid=(256,1,1) block=(768,1,1) lds={K2_LDS}"
```

```python
from asmlib import *
from layout import *

STG = 28672
K3_LDS = 4 * STG

def gen_k3():
    a = Asm()
    name = "k3_kernel"
    a.lines.append(khead(name))
    WS, TR, DD, OUT = 4, 8, 12, 16
    sW, sRB, sCT, sT0, sT1, sT2, sT3 = 30, 31, 32, 33, 34, 35, 36
    sROW8, sTSO, sM0, sD0, sD1, sKH = 37, 38, 39, 40, 41, 42
    vLANE = 1
    vT0, vT1, vT2, vT3 = 2, 3, 4, 5
    vTO, vL16, vR0, vR1, vG, vOO, vRED = 6, 7, 8, 9, 10, 12, 13
    TF, ACC, DF = 16, 32, 96
    NV = 208
    a(f"""
    s_cmp_ge_u32 s2, 224
    s_cbranch_scc1 L_k3_end
    s_load_dwordx2 s[24:25], s[0:1], 72
    s_load_dwordx2 s[26:27], s[0:1], 40
    s_load_dwordx2 s[28:29], s[0:1], 56
    s_getpc_b64 s[20:21]
    s_add_u32 s20, s20, tbl_gf@rel32@lo+4
    s_addc_u32 s21, s21, tbl_gf@rel32@hi+12
    v_and_b32 v{vLANE}, 63, v0
    v_lshrrev_b32 v{vT0}, 6, v0
    s_and_b32 s{sT0}, s2, 7
    s_lshr_b32 s{sT1}, s2, 3
    v_readfirstlane_b32 s{sW}, v{vT0}
    s_lshl_b32 s{sRB}, s{sT0}, 2
    s_and_b32 s{sT2}, s{sT1}, 3
    s_add_u32 s{sRB}, s{sRB}, s{sT2}
    s_lshr_b32 s{sCT}, s{sT1}, 2
    s_and_b32 s{sKH}, s{sW}, 1
    v_lshlrev_b32 v{vL16}, 4, v{vLANE}
    s_mul_i32 s{sM0}, s{sW}, {STG}
    v_lshrrev_b32 v{vT0}, 3, v{vLANE}
    v_and_b32 v{vT1}, 7, v{vLANE}
    v_bfe_u32 v{vT2}, v{vLANE}, 4, 1
    v_lshlrev_b32 v{vT2}, 2, v{vT2}
    v_xor_b32 v{vT1}, v{vT1}, v{vT2}
    v_lshlrev_b32 v{vT1}, 4, v{vT1}
    s_waitcnt lgkmcnt(0)
    """)
    srd(a, WS, "s24", "s25", WS_USED)
    srd(a, OUT, "s28", "s29", 2048*896)
    a(f"""
    s_cmp_ge_u32 s{sW}, 2
    s_cbranch_scc1 L_k3_setF
    """)
    srd(a, TR, "s26", "s27", 448*896)
    srd(a, DD, "s24", "s25", WS_USED)
    a(f"""
    s_mov_b32 s{sROW8}, {8*896}
    v_mul_u32_u24 v{vT0}, 896, v{vT0}
    s_mul_i32 s{sTSO}, s{sKH}, {224*896}
    s_lshl_b32 s{sT0}, s{sCT}, 7
    s_add_u32 s{sTSO}, s{sTSO}, s{sT0}
    s_mul_i32 s{sD0}, s{sRB}, {2*28672}
    s_add_u32 s{sD0}, s{sD0}, {OF}
    s_branch L_k3_setdone
    """)
    a.label("L_k3_setF")
    srd(a, TR, "s24", "s25", WS_USED)
    srd(a, DD, "s20", "s21", 14*28672)
    a(f"""
    s_mov_b32 s{sROW8}, {8*ZTS}
    v_mul_u32_u24 v{vT0}, {ZTS}, v{vT0}
    s_mul_i32 s{sTSO}, s{sKH}, {224*ZTS}
    s_lshl_b32 s{sT0}, s{sRB}, 7
    s_add_u32 s{sTSO}, s{sTSO}, s{sT0}
    s_add_u32 s{sTSO}, s{sTSO}, {ZT}
    s_mul_i32 s{sD0}, s{sCT}, {2*28672}
    """)
    a.label("L_k3_setdone")
    a(f"""
    v_add_u32 v{vTO}, v{vT0}, v{vT1}
    s_mul_i32 s{sT0}, s{sKH}, {14*1024}
    s_add_u32 s{sD0}, s{sD0}, s{sT0}
    s_add_u32 s{sD1}, s{sD0}, 28672
    s_mov_b32 m0, s{sM0}
    s_nop 0
    """)
    for ks in range(14):
        for ii in range(2):
            a.vmem(f"buffer_load_dwordx4 v{vTO}, s[{TR}:{TR+3}], s{sTSO} offen lds", f"k{ks}")
            a(f"s_add_u32 m0, m0, 1024")
            a(f"s_add_u32 s{sTSO}, s{sTSO}, s{sROW8}")
        o = (ks % 4) * 1024
        a.vmem(f"buffer_load_dwordx4 {vr(DF + ks*8, 4)}, v{vL16}, s[{DD}:{DD+3}], s{sD0} offen offset:{o}", f"k{ks}")
        a.vmem(f"buffer_load_dwordx4 {vr(DF + ks*8 + 4, 4)}, v{vL16}, s[{DD}:{DD+3}], s{sD1} offen offset:{o}", f"k{ks}")
        if ks % 4 == 3:
            a(f"s_add_u32 s{sD0}, s{sD0}, 4096")
            a(f"s_add_u32 s{sD1}, s{sD1}, 4096")
    a(f"""
    v_and_b32 v{vT0}, 31, v{vLANE}
    v_lshlrev_b32 v{vT1}, 3, v{vT0}
    s_lshl_b32 s{sT0}, s{sRB}, 9
    s_lshl_b32 s{sT1}, s{sKH}, 8
    s_add_u32 s{sT0}, s{sT0}, s{sT1}
    s_add_u32 s{sT0}, s{sT0}, {GT}
    """)
    a.vmem(f"buffer_load_dwordx2 {vr(vG,2)}, v{vT1}, s[{WS}:{WS+3}], s{sT0} offen", "g")
    a(f"""
    v_lshrrev_b32 v{vT1}, 5, v{vLANE}
    v_bfe_u32 v{vT2}, v{vLANE}, 2, 2
    v_lshl_add_u32 v{vT3}, v{vT1}, 3, v{vT2}
    v_lshlrev_b32 v{vT3}, 7, v{vT3}
    v_lshrrev_b32 v{vT2}, 1, v{vT2}
    v_lshl_add_u32 v{vT3}, v{vT2}, 6, v{vT3}
    v_bfe_u32 v{vT2}, v{vLANE}, 4, 1
    v_lshl_add_u32 v{vT3}, v{vT2}, 5, v{vT3}
    v_and_b32 v{vT2}, 3, v{vLANE}
    v_lshl_add_u32 v{vT3}, v{vT2}, 3, v{vT3}
    v_add_u32 v{vR0}, s{sM0}, v{vT3}
    v_xor_b32 v{vR1}, 64, v{vR0}
    v_and_b32 v{vT2}, 7, v{vT0}
    v_mul_u32_u24 v{vOO}, 57344, v{vT2}
    v_lshrrev_b32 v{vT2}, 3, v{vT0}
    v_mul_u32_u24 v{vT2}, 896, v{vT2}
    v_add_u32 v{vOO}, v{vOO}, v{vT2}
    v_lshl_add_u32 v{vOO}, v{vT1}, 3, v{vOO}
    v_add_u32 v{vRED}, s{sM0}, v{vL16}
    s_cmp_ge_u32 s{sW}, 2
    s_cbranch_scc1 L_k3_F
    """)
    snap = a.snapshot()
    def main(typ):
        def reads(ks):
            for hf in range(2):
                for rho in range(2):
                    a.lds(f"ds_read_b64_tr_b16 {vr(TF + (ks%2)*8 + hf*4 + rho*2, 2)}, v{vR0 if hf == 0 else vR1} offset:{ks*2048 + rho*512}", f"r{ks}")
        a.wait_vm("k0")
        reads(0)
        for ks in range(14):
            if ks + 1 < 14:
                a.wait_vm(f"k{ks+1}")
                if ks + 1 == 13: a.comment("STAMP3")
                reads(ks + 1)
            a.wait_lg(f"r{ks}")
            for c2 in range(2):
                for tt in range(2):
                    d = vr(ACC + (c2*2 + tt)*16, 16)
                    c = "0" if ks == 0 else d
                    if typ == 0: A = vr(TF + (ks%2)*8 + c2*4, 4); B = vr(DF + ks*8 + tt*4, 4)
                    else:        A = vr(DF + ks*8 + c2*4, 4); B = vr(TF + (ks%2)*8 + tt*4, 4)
                    a(f"v_mfma_f32_32x32x16_bf16 {d}, {A}, {B}, {c}")
    def tail(w):
        a("s_nop 15")
        for o in range(4):
            if o == w: continue
            for r in range(4):
                a(f"ds_write_b128 v{vRED}, {vr(ACC + o*16 + 4*r, 4)} offset:{o*4096 + r*1024}")
        a(f"""
        s_lshr_b32 s{sT0}, s{sRB}, 3
        s_lshl_b32 s{sT0}, s{sT0}, 9
        s_and_b32 s{sT1}, s{sRB}, 7
        s_lshl_b32 s{sT1}, s{sT1}, 3
        s_add_u32 s{sT0}, s{sT0}, s{sT1}
        s_add_u32 s{sT0}, s{sT0}, {4*(w & 1)}
        s_mul_i32 s{sT0}, s{sT0}, 896
        s_lshl_b32 s{sT1}, s{sCT}, 7
        s_add_u32 s{sT0}, s{sT0}, s{sT1}
        s_add_u32 s{sT0}, s{sT0}, {(w >> 1) * 64}
        v_add_u32 v{vT2}, {2*STG}, v{vL16}
        s_waitcnt vmcnt(0) lgkmcnt(0)
        s_barrier
        """)
        srcs = [s for s in range(4) if s != w]
        for n, s in enumerate(srcs):
            for r in range(4):
                base = vL16 if s < 2 else vT2
                a(f"ds_read_b128 {vr(DF + n*16 + 4*r, 4)}, v{base} offset:{(s % 2)*STG + w*4096 + r*1024}")
        a("s_waitcnt lgkmcnt(0)")
        def part(s, r):
            return ACC + w*16 + r if s == w else DF + srcs.index(s)*16 + r
        R = DF + 48
        for r in range(16):
            a(f"""
            v_add_f32 v{vT0}, v{part(0,r)}, v{part(1,r)}
            v_add_f32 v{vT1}, v{part(2,r)}, v{part(3,r)}
            v_mul_f32 v{vT0}, v{vT0}, v{vG+1}
            v_fma_f32 v{R+r}, v{vT1}, v{vG}, v{vT0}
            """)
        for qd in range(4):
            a(f"v_cvt_pk_bf16_f32 v{R+4*qd}, v{R+4*qd}, v{R+4*qd+1}")
            a(f"v_cvt_pk_bf16_f32 v{R+4*qd+1}, v{R+4*qd+2}, v{R+4*qd+3}")
            a(f"buffer_store_dwordx2 {vr(R+4*qd,2)}, v{vOO}, s[{OUT}:{OUT+3}], s{sT0} offen offset:{qd*16}")
        a("s_endpgm")
    main(0)
    a(f"s_cmp_eq_u32 s{sW}, 1")
    a("s_cbranch_scc1 L_k3_t1")
    tail(0)
    a.label("L_k3_t1"); tail(1)
    a.label("L_k3_F"); a.restore(snap)
    main(1)
    a(f"s_cmp_eq_u32 s{sW}, 3")
    a("s_cbranch_scc1 L_k3_t3")
    tail(2)
    a.label("L_k3_t3"); tail(3)
    a.label("L_k3_end")
    a("s_endpgm")
    return a.text(), kdesc(name, NV, 64), f"; @launch kernel={name} grid=(224,1,1) block=(256,1,1) lds={K3_LDS}"
```

```python
import sys
from k1 import gen_k1
from tables import gen_tables
HEADER = open("gated_mix__spectral_gfnet__mha_block__prompt.s.ref").read().split("; Override launch")[0]
def build(kernels, path):
    txt = HEADER
    for code, desc, launch in kernels: txt += launch + "\n"
    txt += '.amdgcn_target "amdgcn-amd-amdhsa--gfx950"\n.text\n'
    for code, desc, launch in kernels: txt += code
    txt += '.section .rodata,"a"\n'
    for code, desc, launch in kernels: txt += desc
    txt += gen_tables()
    open(path, "w").write(txt)
if __name__ == "__main__":
    ks = [gen_k1()]
    try:
        from k2 import gen_k2
        ks.append(gen_k2())
        from k3 import gen_k3
        ks.append(gen_k3())
    except ImportError as e:
        print("partial build:", e)
    if "--instr" in sys.argv:
        from instr import instrument
        info = [(12, 37), (4, 30), (4, 30)]
        ks = [(instrument(c, i, *info[i]), d.replace("next_free_sgpr 64", "next_free_sgpr 96"), l) for i, (c, d, l) in enumerate(ks)]
    if "--instr2" in sys.argv:
        from instr2 import instrument2
        ks = [(instrument2(c, i), d.replace("next_free_sgpr 64", "next_free_sgpr 96"), l) for i, (c, d, l) in enumerate(ks)]
    build(ks, sys.argv[1] if len(sys.argv) > 1 else "gated_mix__spectral_gfnet__mha_block__prompt.s")
```

```python
from asmlib import *
from layout import *
from tables import FFT_SIZE
import math, os, struct
EXP = os.environ.get('K1EXP', '')

SLOT = 31744
NSLOT = 5
LDS_F = SLOT * NSLOT
K1_LDS = LDS_F + 64
QSCALE = (28 ** -0.5) * math.log2(math.e)
def f2u(f): return struct.unpack("<I", struct.pack("<f", f))[0]

def spin_ge(a, vaddr, vtmp, stmp, off, val, first_sleep=False):
    lsp = a.newlabel("sp"); lok = a.newlabel("ok")
    a.label(lsp)
    a(f"""
    ds_read_b32 v{vtmp}, v{vaddr} offset:{off}
    s_waitcnt lgkmcnt(0)
    v_readfirstlane_b32 s{stmp}, v{vtmp}
    s_cmp_ge_u32 s{stmp}, {val}
    s_cbranch_scc1 {lok}
    s_sleep 1
    s_branch {lsp}
    """)
    a.label(lok)
    a.lg = []

def gen_k1():
    a = Asm()
    name = "k1_kernel"
    a.lines.append(khead(name))
    X, BS, WS, WR, WI = 4, 8, 12, 16, 20
    sMT, sTY, sHG, sW, sMQ = 34, 35, 36, 37, 38
    sT0, sT1, sT2, sT3 = 40, 41, 42, 43
    sBROW, sASO, sBSO, sFL = 44, 45, 46, 47
    sMASK56 = 48
    sBCH, sB4, sOB, sSC, sCC, sTOK, sCOL = 50, 51, 52, 53, 54, 55, 56
    sAOFF = 64 - 4
    vLANE = 1
    vT0, vT1, vT2, vT3 = 2, 3, 4, 5
    vFA, vFT, vONE = 6, 7, 8
    a(f"""
    s_cmp_ge_u32 s2, 256
    s_cbranch_scc1 L_k1_end
    s_load_dwordx4 s[24:27], s[0:1], 0
    s_load_dwordx2 s[28:29], s[0:1], 16
    s_load_dwordx2 s[30:31], s[0:1], 32
    s_load_dwordx2 s[32:33], s[0:1], 72
    s_getpc_b64 s[58:59]
    s_add_u32 s58, s58, tbl_fd@rel32@lo+4
    s_addc_u32 s59, s59, tbl_fd@rel32@hi+12
    v_and_b32 v{vLANE}, 63, v0
    v_lshrrev_b32 v{vT0}, 6, v0
    s_and_b32 s{sT0}, s2, 7
    s_lshr_b32 s{sT1}, s2, 3
    v_readfirstlane_b32 s{sW}, v{vT0}
    s_lshr_b32 s{sHG}, s{sT0}, 1
    s_and_b32 s{sT2}, s{sT0}, 1
    s_lshl_b32 s{sT2}, s{sT2}, 3
    s_and_b32 s{sMT}, s{sT1}, 7
    s_add_u32 s{sMT}, s{sMT}, s{sT2}
    s_lshr_b32 s{sTY}, s{sT1}, 3
    s_and_b32 s{sMQ}, s{sW}, 3
    v_mov_b32 v{vFA}, {LDS_F}
    v_mov_b32 v{vONE}, 1
    s_cmp_ge_u32 s{sW}, 4
    s_cbranch_scc0 L_k1_compute
    """)
    vAO, vBO, vWKO, vWSO = 9, 10, 11, 12
    vWT = 16
    vZ = 40
    a(f"""
    s_lshr_b32 s{sTOK}, s{sMT}, 2
    s_lshl_b32 s{sTOK}, s{sTOK}, 9
    s_and_b32 s{sT2}, s{sMT}, 3
    s_lshl_b32 s{sT2}, s{sT2}, 4
    s_add_u32 s{sTOK}, s{sTOK}, s{sT2}
    s_mul_i32 s{sTOK}, s{sTOK}, 896
    v_lshrrev_b32 v{vT0}, 3, v{vLANE}
    v_and_b32 v{vT1}, 7, v{vLANE}
    v_xor_b32 v{vT1}, v{vT1}, v{vT0}
    v_lshlrev_b32 v{vT1}, 4, v{vT1}
    v_mul_u32_u24 v{vT2}, 57344, v{vT0}
    v_and_b32 v{vT3}, 3, v{vT0}
    v_mul_u32_u24 v{vT3}, 57344, v{vT3}
    v_lshrrev_b32 v{vT0}, 2, v{vT0}
    v_mul_u32_u24 v{vT0}, 896, v{vT0}
    v_add_u32 v{vT3}, v{vT3}, v{vT0}
    s_cmp_eq_u32 s{sTY}, 3
    s_cselect_b64 vcc, -1, 0
    s_nop 1
    v_cndmask_b32 v{vT2}, v{vT2}, v{vT3}, vcc
    v_add3_u32 v{vAO}, v{vT2}, v{vT1}, s{sTOK}
    v_mul_u32_u24 v{vT0}, 4682, v{vLANE}
    v_lshrrev_b32 v{vT0}, 16, v{vT0}
    v_mul_u32_u24 v{vT1}, 14, v{vT0}
    v_sub_u32 v{vT1}, v{vLANE}, v{vT1}
    v_lshlrev_b32 v{vT1}, 4, v{vT1}
    v_cmp_gt_u32 vcc, 56, v{vLANE}
    s_mov_b64 s[{sMASK56}:{sMASK56+1}], vcc
    s_mov_b32 s{sBROW}, 2688
    s_cmp_eq_u32 s{sTY}, 3
    s_cselect_b32 s{sBROW}, 896, s{sBROW}
    s_cselect_b32 s{sCOL}, 0, s{sTY}
    s_lshl_b32 s{sCOL}, s{sCOL}, 2
    s_add_u32 s{sCOL}, s{sCOL}, s{sHG}
    s_mul_i32 s{sCOL}, s{sCOL}, 224
    v_mul_lo_u32 v{vT0}, v{vT0}, s{sBROW}
    v_add3_u32 v{vBO}, v{vT0}, v{vT1}, s{sCOL}
    s_lshl_b32 s{sBCH}, s{sBROW}, 6
    s_lshl_b32 s{sB4}, s{sBROW}, 2
    s_lshl_b32 s{sCC}, s{sTY}, 1
    s_add_u32 s{sCC}, s{sCC}, s{sMT}
    {"s_mov_b32 s" + str(sCC) + ", 0" if "norot" in EXP else ""}
    {"s_and_b32 s" + str(sCC) + ", s2, 7" if "rotxcd" in EXP else ""}
    {"s_and_b32 s" + str(sCC) + ", s2, 7" if "rotmix" in EXP else ""}
    {"s_bfe_u32 s" + str(sT2) + ", s2, 0x10003" if "rotmix" in EXP else ""}
    {"s_mul_i32 s" + str(sT2) + ", s" + str(sT2) + ", 3" if "rotmix" in EXP else ""}
    {"s_add_u32 s" + str(sCC) + ", s" + str(sCC) + ", s" + str(sT2) if "rotmix" in EXP else ""}
    s_add_u32 s{sCC}, s{sCC}, s{sMQ}
    """)
    a("s_waitcnt lgkmcnt(0)")
    srd(a, X, "s24", "s25", 2048*896)
    a(f"""
    s_mov_b32 s{BS+2}, {448*2688}
    s_cmp_eq_u32 s{sTY}, 3
    s_cselect_b32 s{BS}, s58, s30
    s_cselect_b32 s{BS+1}, s59, s31
    s_cselect_b32 s{BS+2}, {448*896}, s{BS+2}
    s_mov_b32 s{BS+3}, 0x20000
    s_and_b32 s{BS+1}, s{BS+1}, 0xffff
    """)
    DEPTH = int(os.environ.get('K1DEPTH', '3'))
    sAO = [60, 61, 62, 63]
    sM0A, sM0B, sBW = 57, 39, 22
    a(f"s_mul_i32 s{sT2}, s{sMQ}, {4*896}")
    for ii in range(4):
        a(f"""
        s_mov_b32 s{sT3}, {ii*896}
        s_cmp_eq_u32 s{sTY}, 3
        s_cselect_b32 s{sT3}, {(256*(ii >> 1) + 2*(ii & 1))*896}, s{sT3}
        s_add_u32 s{sAO[ii]}, s{sT3}, s{sT2}
        """)
    a(f"""
    s_lshl_b32 s{sM0A}, s{sMQ}, 12
    s_mul_i32 s{sM0B}, s{sMQ}, 3840
    s_add_u32 s{sM0B}, s{sM0B}, 16384
    s_lshl_b32 s{sT2}, s{sB4}, 2
    s_mul_i32 s{sBW}, s{sT2}, s{sMQ}
    s_sub_u32 s{sCC}, s{sCC}, s{sMQ}
    s_mul_i32 s{sT3}, s{sCC}, 37
    s_lshr_b32 s{sT3}, s{sT3}, 8
    s_mul_i32 s{sT3}, s{sT3}, 7
    s_sub_u32 s{sT3}, s{sCC}, s{sT3}
    s_lshl_b32 s{sASO}, s{sT3}, 7
    s_mul_i32 s{sBSO}, s{sT3}, s{sBCH}
    """)
    def issue(c):
        slot = (c % NSLOT) * SLOT
        for ii in range(4):
            a(f"s_add_u32 m0, s{sM0A}, {slot + ii*1024}")
            a(f"s_add_u32 s{sT2}, s{sAO[ii]}, s{sASO}")
            a.vmem(f"buffer_load_dwordx4 v{vAO}, s[{X}:{X+3}], s{sT2} offen lds", f"c{c}")
        a(f"s_mov_b64 exec, s[{sMASK56}:{sMASK56+1}]")
        a(f"s_add_u32 s{sT2}, s{sBSO}, s{sBW}")
        for ii in range(4):
            a(f"s_add_u32 m0, s{sM0B}, {slot + (ii >> 1)*1920 + (ii & 1)*896}")
            if ii > 0: a(f"s_add_u32 s{sT2}, s{sT2}, s{sB4}")
            else: a("s_nop 0")
            a.vmem(f"buffer_load_dwordx4 v{vBO}, s[{BS}:{BS+3}], s{sT2} offen lds", f"c{c}")
        a(f"""
        s_mov_b64 exec, -1
        s_add_u32 s{sASO}, s{sASO}, 128
        s_add_u32 s{sBSO}, s{sBSO}, s{sBCH}
        s_cmp_eq_u32 s{sASO}, 896
        s_cselect_b32 s{sASO}, 0, s{sASO}
        s_cselect_b32 s{sBSO}, 0, s{sBSO}
        """)
    XA, XB, GWr, U = 44, 48, 52, 56
    sGT = 39
    def wt_issue():
        srd(a, WR, "s26", "s27", 2048*450)
        srd(a, WI, "s28", "s29", 2048*450)
        srd(a, WS, "s32", "s33", WS_USED)
        a(f"""
        s_and_b32 s{sT0}, s2, 7
        s_lshr_b32 s{sT1}, s2, 3
        s_lshl_b32 s{sT2}, s{sT0}, 5
        s_add_u32 s{sT2}, s{sT2}, s{sT1}
        s_lshl_b32 s{sT2}, s{sT2}, 3
        s_mul_i32 s{sT3}, s{sT2}, 450
        v_and_b32 v{vT0}, 255, v0
        v_lshlrev_b32 v{vWKO}, 1, v{vT0}
        v_mul_u32_u24 v{vWSO}, {WFS}, v{vT0}
        s_lshl_b32 s{sT2}, s{sT2}, 2
        s_add_u32 s{sT2}, s{sT2}, {WF}
        v_add_u32 v{vWSO}, s{sT2}, v{vWSO}
        v_mov_b32 v{vT1}, 0x7fffffff
        v_cmp_gt_u32 vcc, 225, v{vT0}
        s_nop 1
        v_cndmask_b32 v{vWSO}, v{vT1}, v{vWSO}, vcc
        """)
        for i in range(8):
            a.vmem(f"buffer_load_ushort v{vWT+i}, v{vWKO}, s[{WR}:{WR+3}], s{sT3} offen offset:{450*i}", "wt")
            a.vmem(f"buffer_load_ushort v{vWT+8+i}, v{vWKO}, s[{WI}:{WI+3}], s{sT3} offen offset:{450*i}", "wt")

    def gate_issue():
        a(f"""
        s_load_dwordx2 s[62:63], s[0:1], 48
        s_lshl_b32 s{sT0}, s2, 3
        s_lshl_b32 s{sT1}, s{sMQ}, 1
        s_add_u32 s{sGT}, s{sT0}, s{sT1}
        s_and_b32 s{sT1}, s{sGT}, 7
        s_lshl_b32 s{sT1}, s{sT1}, 6
        s_bfe_u32 s{sT2}, s{sGT}, 0x60003
        s_add_u32 s{sT1}, s{sT1}, s{sT2}
        s_lshr_b32 s{sT2}, s{sGT}, 9
        s_lshl_b32 s{sT2}, s{sT2}, 9
        s_add_u32 s{sT1}, s{sT1}, s{sT2}
        s_mul_i32 s{sT1}, s{sT1}, 896
        s_add_u32 s{sT2}, s{sT1}, {64*896}
        v_lshlrev_b32 v{vT2}, 4, v{vLANE}
        v_mov_b32 v{vT1}, 0x7fffffff
        v_cndmask_b32 v{vT1}, v{vT1}, v{vT2}, s[{sMASK56}:{sMASK56+1}]
        s_waitcnt lgkmcnt(0)
        """)
        srd(a, BS, "s62", "s63", 896)
        a.vmem(f"buffer_load_dwordx4 {vr(XA,4)}, v{vT1}, s[{X}:{X+3}], s{sT1} offen", "gt")
        a.vmem(f"buffer_load_dwordx4 {vr(XB,4)}, v{vT1}, s[{X}:{X+3}], s{sT2} offen", "gt")
        a.vmem(f"buffer_load_dwordx4 {vr(GWr,4)}, v{vT1}, s[{BS}:{BS+3}], 0 offen", "gt")
    def gate_finish():
        vA, vB = 13, 14
        for r in range(4):
            a(f"v_lshlrev_b32 v{U+2*r}, 16, v{GWr+r}")
            a(f"v_and_b32 v{U+2*r+1}, 0xffff0000, v{GWr+r}")
        for Xr, acc in ((XA, vT2), (XB, vT3)):
            for r in range(4):
                a(f"""
                v_lshlrev_b32 v{vA}, 16, v{Xr+r}
                v_and_b32 v{vB}, 0xffff0000, v{Xr+r}
                v_mul_f32 v{vA}, v{vA}, v{U+2*r}
                v_mul_f32 v{vB}, v{vB}, v{U+2*r+1}
                v_cvt_pk_bf16_f32 v{vA}, v{vA}, v{vB}
                v_lshlrev_b32 v{vB}, 16, v{vA}
                v_and_b32 v{vA}, 0xffff0000, v{vA}
                """)
                if r == 0: a(f"v_add_f32 v{acc}, v{vA}, v{vB}")
                else:
                    a(f"v_add_f32 v{acc}, v{acc}, v{vA}")
                    a(f"v_add_f32 v{acc}, v{acc}, v{vB}")
        for dpp in ("row_shr:1 bound_ctrl:0", "row_shr:2 bound_ctrl:0", "row_shr:4 bound_ctrl:0", "row_shr:8 bound_ctrl:0", "row_bcast:15 row_mask:0xa", "row_bcast:31 row_mask:0xc"):
            a("s_nop 1")
            a(f"v_add_f32_dpp v{vT2}, v{vT2}, v{vT2} {dpp}")
            a(f"v_add_f32_dpp v{vT3}, v{vT3}, v{vT3} {dpp}")
        a(f"""
        v_cvt_pk_bf16_f32 v{vA}, v{vT2}, v{vT3}
        v_lshlrev_b32 v{vT2}, 16, v{vA}
        v_and_b32 v{vT3}, 0xffff0000, v{vA}
        v_mul_f32 v{vT2}, {f2u(-1.4426950408889634)}, v{vT2}
        v_mul_f32 v{vT3}, {f2u(-1.4426950408889634)}, v{vT3}
        v_exp_f32 v{vT2}, v{vT2}
        v_exp_f32 v{vT3}, v{vT3}
        s_nop 0
        v_add_f32 v{vT2}, 1.0, v{vT2}
        v_add_f32 v{vT3}, 1.0, v{vT3}
        v_rcp_f32 v{vT2}, v{vT2}
        v_rcp_f32 v{vT3}, v{vT3}
        s_nop 0
        v_cvt_pk_bf16_f32 v{vA}, v{vT2}, v{vT3}
        v_lshlrev_b32 v{U}, 16, v{vA}
        v_and_b32 v{U+2}, 0xffff0000, v{vA}
        v_sub_f32 v{vT2}, 1.0, v{U}
        v_sub_f32 v{vT3}, 1.0, v{U+2}
        v_cvt_pk_bf16_f32 v{vA}, v{vT2}, v{vT3}
        v_lshlrev_b32 v{U+1}, 16, v{vA}
        v_and_b32 v{U+3}, 0xffff0000, v{vA}
        v_mov_b32 v{vT1}, 0x7fffffff
        v_cmp_eq_u32 vcc, 63, v{vLANE}
        s_lshl_b32 s{sGT}, s{sGT}, 3
        s_add_u32 s{sGT}, s{sGT}, {GT}
        v_cndmask_b32 v{vT1}, v{vT1}, 0, vcc
        buffer_store_dwordx4 {vr(U,4)}, v{vT1}, s[{WS}:{WS+3}], s{sGT} offen
        """)
    def prefetch_k2():
        a(f"""
        s_getpc_b64 s[60:61]
        s_add_u32 s60, s60, tbl_fft@rel32@lo+4
        s_addc_u32 s61, s61, tbl_fft@rel32@hi+12
        s_getpc_b64 s[62:63]
        s_add_u32 s62, s62, k2_kernel@rel32@lo+4
        s_addc_u32 s63, s63, k2_kernel@rel32@hi+12
        s_lshr_b32 s{sT0}, s2, 3
        s_lshl_b32 s{sT0}, s{sT0}, 2
        s_add_u32 s{sT0}, s{sT0}, s{sMQ}
        s_mul_i32 s{sT1}, s{sT0}, 576
        v_lshlrev_b32 v{vT1}, 7, v{vLANE}
        v_min_u32 v{vT2}, 640, v{vT1}
        """)
        srd(a, BS, "s60", "s61", FFT_SIZE)
        a.vmem(f"buffer_load_dword v15, v{vT2}, s[{BS}:{BS+3}], s{sT1} offen", "pf")
        srd(a, BS, "s62", "s63", "L_k2_end-k2_kernel")
        a(f"s_lshl_b32 s{sT1}, s{sMQ}, 13")
        a.vmem(f"buffer_load_dword v15, v{vT1}, s[{BS}:{BS+3}], s{sT1} offen", "pf")
    issue(0)
    a("s_barrier")
    for c in range(1, DEPTH): issue(c)
    for c in range(7):
        a.wait_vm(f"c{c}")
        a(f"""
        s_mov_b64 exec, 1
        ds_add_u32 v{vFA}, v{vONE} offset:{4 + 4*c}
        s_mov_b64 exec, -1
        """)
        if c == 0: a.comment("STAMP2")
        if c == 3: a.comment("STAMP3")
        if c == 6: a.comment("STAMP4")
        n = c + DEPTH
        if n < 7:
            if n >= NSLOT: spin_ge(a, vFA, vFT, sFL, 32 + 4*(n - NSLOT), 4)
            issue(n)
            if n == 6:
                wt_issue(); gate_issue()
                if 'nopf' not in EXP: prefetch_k2()
    a(f"""
    s_cmp_eq_u32 s{sTY}, 3
    s_cbranch_scc1 L_k1_paddone
    s_cmp_eq_u32 s{sTY}, 2
    s_cbranch_scc1 L_k1_padv
    """)
    a(f"""
    v_lshrrev_b32 v{vT2}, 7, v{vT0}
    s_lshl_b32 s{sT3}, s{sHG}, 2
    v_add_u32 v{vT2}, s{sT3}, v{vT2}
    v_lshlrev_b32 v{vT2}, 6, v{vT2}
    v_bfe_u32 v{vT3}, v{vT0}, 5, 2
    s_lshl_b32 s{sT3}, s{sMT}, 2
    v_add3_u32 v{vT2}, v{vT2}, v{vT3}, s{sT3}
    s_add_u32 s{sT3}, s{sTY}, 11
    v_lshlrev_b32 v{vT2}, s{sT3}, v{vT2}
    v_and_b32 v{vT3}, 31, v{vT0}
    v_lshl_add_u32 v{vT2}, v{vT3}, 4, v{vT2}
    s_mul_i32 s{sT3}, s{sTY}, {KV}
    s_add_u32 s{sT3}, s{sT3}, {1024+512+8}
    s_lshl_b32 s{sT2}, 0x40000, s{sTY}
    s_add_u32 s{sT2}, s{sT2}, s{sT3}
    v_mov_b32 v{vZ}, 0
    v_mov_b32 v{vZ+1}, 0
    buffer_store_dwordx2 v[{vZ}:{vZ+1}], v{vT2}, s[{WS}:{WS+3}], s{sT3} offen
    buffer_store_dwordx2 v[{vZ}:{vZ+1}], v{vT2}, s[{WS}:{WS+3}], s{sT2} offen
    s_branch L_k1_paddone
    L_k1_padv:
    s_cmp_eq_u32 s{sMQ}, 3
    s_cbranch_scc0 L_k1_paddone
    v_lshrrev_b32 v{vT2}, 4, v{vLANE}
    s_lshl_b32 s{sT3}, s{sHG}, 2
    v_add_u32 v{vT2}, s{sT3}, v{vT2}
    v_lshlrev_b32 v{vT2}, 6, v{vT2}
    v_bfe_u32 v{vT3}, v{vLANE}, 2, 2
    s_lshl_b32 s{sT3}, s{sMT}, 2
    v_add3_u32 v{vT2}, v{vT2}, v{vT3}, s{sT3}
    v_lshlrev_b32 v{vT2}, 12, v{vT2}
    v_and_b32 v{vT3}, 3, v{vLANE}
    v_lshl_add_u32 v{vT2}, v{vT3}, 9, v{vT2}
    v_mov_b32 v{vZ}, 0x3f803f80
    v_mov_b32 v{vZ+1}, 0x3f803f80
    v_mov_b32 v{vZ+2}, 0x3f803f80
    v_mov_b32 v{vZ+3}, 0x3f803f80
    s_mov_b32 s{sT3}, {KV + 2048 + 28*16}
    buffer_store_dwordx4 v[{vZ}:{vZ+3}], v{vT2}, s[{WS}:{WS+3}], s{sT3} offen
    L_k1_paddone:
    s_waitcnt vmcnt(0)
    """)
    for i in range(8):
        a(f"v_lshl_or_b32 v{vWT+i}, v{vWT+8+i}, 16, v{vWT+i}")
    a(f"""
    buffer_store_dwordx4 v[{vWT}:{vWT+3}], v{vWSO}, s[{WS}:{WS+3}], 0 offen
    buffer_store_dwordx4 v[{vWT+4}:{vWT+7}], v{vWSO}, s[{WS}:{WS+3}], 0 offen offset:16
    """)
    gate_finish()
    a("s_endpgm")

    a.label("L_k1_compute")
    vLA = [[9, 10], [11, 12], [13, 14]]
    vLB = [15, 16, 17]
    vPK = 18
    vEO = 20
    ACC, AF, BF = 32, 88, 104
    NV = 160
    a(f"""
    v_and_b32 v{vT0}, 15, v{vLANE}
    v_lshl_add_u32 v{vT1}, v{vT0}, 2, v{vFA}
    v_cmp_eq_u32 vcc, 0, v{vT0}
    v_mov_b32 v{vT2}, 0
    s_nop 0
    v_cndmask_b32 v{vT2}, v{vT2}, v{vONE}, vcc
    ds_write_b32 v{vT1}, v{vT2}
    v_lshrrev_b32 v{vT1}, 4, v{vLANE}
    v_and_b32 v{vT2}, 7, v{vT0}
    v_xor_b32 v{vT2}, v{vT2}, v{vT1}
    v_lshlrev_b32 v{vT2}, 4, v{vT2}
    v_lshl_add_u32 v{vT2}, v{vT0}, 7, v{vT2}
    s_lshl_b32 s{sT3}, s{sMQ}, 12
    v_add_u32 v{vLA[0][0]}, s{sT3}, v{vT2}
    v_xor_b32 v{vLA[0][1]}, 64, v{vLA[0][0]}
    v_add_u32 v{vLA[1][0]}, {2*SLOT}, v{vLA[0][0]}
    v_add_u32 v{vLA[1][1]}, {2*SLOT}, v{vLA[0][1]}
    v_add_u32 v{vLA[2][0]}, {4*SLOT}, v{vLA[0][0]}
    v_add_u32 v{vLA[2][1]}, {4*SLOT}, v{vLA[0][1]}
    v_mul_u32_u24 v{vT2}, 1920, v{vT1}
    v_lshrrev_b32 v{vT3}, 2, v{vT0}
    v_mul_u32_u24 v{vT3}, 224, v{vT3}
    v_add_u32 v{vT2}, v{vT2}, v{vT3}
    v_and_b32 v{vT3}, 3, v{vLANE}
    v_lshl_add_u32 v{vLB[0]}, v{vT3}, 3, v{vT2}
    v_add_u32 v{vLB[1]}, {2*SLOT}, v{vLB[0]}
    v_add_u32 v{vLB[2]}, {4*SLOT}, v{vLB[0]}
    s_waitcnt lgkmcnt(0)
    s_barrier
    """)
    srd(a, WS, "s32", "s33", WS_USED)
    NT = 7
    for j in range(NT): a(f"v_mov_b32 v{vEO+j}, 0")
    a(f"s_mov_b32 s{sSC}, 1.0")
    def eo_T0():
        lq = a.newlabel("k1dfto"); lend = a.newlabel("k1eod")
        a(f"""
        s_cmp_eq_u32 s{sTY}, 3
        s_cbranch_scc1 {lq}
        s_add_u32 s{sT2}, s{sTY}, 17
        """)
        for j in range(NT):
            a(f"""
            v_lshlrev_b32 v{vT2}, 2, v{vT1}
            v_add_u32 v{vT2}, {16*j}, v{vT2}
            v_mul_u32_u24 v{vT3}, 2341, v{vT2}
            v_lshrrev_b32 v{vT3}, 16, v{vT3}
            v_mul_u32_u24 v{vPK}, 28, v{vT3}
            v_sub_u32 v{vT2}, v{vT2}, v{vPK}
            v_lshlrev_b32 v{vT3}, s{sT2}, v{vT3}
            v_lshrrev_b32 v{vPK}, 3, v{vT2}
            v_lshl_add_u32 v{vT3}, v{vPK}, 9, v{vT3}
            v_and_b32 v{vT2}, 4, v{vT2}
            v_lshl_add_u32 v{vT3}, v{vT2}, 1, v{vT3}
            v_lshl_add_u32 v{vEO+j}, v{vT0}, 4, v{vT3}
            """)
        a(f"""
        s_lshl_b32 s{sOB}, s{sHG}, 8
        s_lshl_b32 s{sT3}, s{sMT}, 2
        s_add_u32 s{sOB}, s{sOB}, s{sT3}
        s_add_u32 s{sOB}, s{sOB}, s{sMQ}
        s_add_u32 s{sT3}, s{sTY}, 11
        s_lshl_b32 s{sOB}, s{sOB}, s{sT3}
        s_mul_i32 s{sT3}, s{sTY}, {KV}
        s_add_u32 s{sOB}, s{sOB}, s{sT3}
        s_cmp_eq_u32 s{sTY}, 0
        s_cselect_b32 s{sSC}, {f2u(QSCALE)}, 1.0
        s_branch {lend}
        """)
        a.label(lq)
        a(f"""
        v_mul_u32_u24 v{vT2}, {2*X1S}, v{vT1}
        v_lshl_add_u32 v{vEO}, v{vT0}, 2, v{vT2}
        v_add_u32 v{vEO+1}, {X1S}, v{vEO}
        s_mul_i32 s{sOB}, s{sHG}, {56*X1S}
        s_bfe_u32 s{sT3}, s{sMT}, 0x10001
        s_lshl_b32 s{sT3}, s{sT3}, 12
        s_add_u32 s{sOB}, s{sOB}, s{sT3}
        s_lshr_b32 s{sT3}, s{sMT}, 2
        s_lshl_b32 s{sT3}, s{sT3}, 10
        s_add_u32 s{sOB}, s{sOB}, s{sT3}
        s_and_b32 s{sT3}, s{sMT}, 1
        s_lshl_b32 s{sT3}, s{sT3}, 8
        s_add_u32 s{sOB}, s{sOB}, s{sT3}
        s_lshl_b32 s{sT3}, s{sMQ}, 6
        s_add_u32 s{sOB}, s{sOB}, s{sT3}
        s_add_u32 s{sOB}, s{sOB}, {X1F}
        """)
        a.label(lend)
    def eo_T1():
        a(f"""
        v_bfe_u32 v{vT1}, v{vLANE}, 4, 1
        v_lshlrev_b32 v{vT1}, 9, v{vT1}
        v_lshrrev_b32 v{vT2}, 5, v{vLANE}
        v_lshl_add_u32 v{vT1}, v{vT2}, 3, v{vT1}
        """)
        for j in range(NT):
            a(f"""
            v_add_u32 v{vT2}, {16*j}, v{vT0}
            v_mul_u32_u24 v{vT3}, 2341, v{vT2}
            v_lshrrev_b32 v{vT3}, 16, v{vT3}
            v_mul_u32_u24 v{vPK}, 28, v{vT3}
            v_sub_u32 v{vT2}, v{vT2}, v{vPK}
            v_lshl_add_u32 v{vT3}, v{vT3}, 18, v{vT1}
            v_lshl_add_u32 v{vEO+j}, v{vT2}, 4, v{vT3}
            """)
        a(f"""
        s_lshl_b32 s{sOB}, s{sHG}, 8
        s_lshl_b32 s{sT3}, s{sMT}, 2
        s_add_u32 s{sOB}, s{sOB}, s{sT3}
        s_add_u32 s{sOB}, s{sOB}, s{sMQ}
        s_lshl_b32 s{sOB}, s{sOB}, 12
        s_add_u32 s{sOB}, s{sOB}, {KV + 2048}
        """)
    def mainloop(T):
        def reads(t):
            c = t // 2; tt = t % 2; buf = t % 2
            slot = c % NSLOT
            bs = slot // 2; so = (slot % 2) * SLOT
            L = []
            for i in range(2):
                L.append(f"ds_read_b128 {vr(AF + buf*8 + i*4, 4)}, v{vLA[bs][tt]} offset:{so + i*2048}")
            for j in range(NT):
                for rho in range(2):
                    L.append(f"ds_read_b64_tr_b16 {vr(BF + buf*28 + j*4 + rho*2, 2)}, v{vLB[bs]} offset:{so + 16384 + tt*7680 + rho*896 + j*32}")
            return L
        def mfmas(t):
            buf = t % 2
            L = []
            for j in range(NT):
                for i in range(2):
                    d = vr(ACC + (i*7 + j)*4, 4)
                    c = "0" if t == 0 else d
                    xa = vr(AF + buf*8 + i*4, 4); wb = vr(BF + buf*28 + j*4, 4)
                    L.append(f"v_mfma_f32_16x16x32_bf16 {d}, {wb}, {xa}, {c}" if T == 0 else f"v_mfma_f32_16x16x32_bf16 {d}, {xa}, {wb}, {c}")
            return L
        def inter(M, R, pend):
            ri = 0
            for j in range(NT):
                n = (14 - 2*(j + 1)) + ri
                a(f"s_waitcnt lgkmcnt({min(n, 15)})")
                a(M[2*j])
                for _ in range(2 if j < 6 else 0):
                    if ri < len(R): a(R[ri]); ri += 1
                a(M[2*j + 1])
                if ri < len(R) and j < 6: a(R[ri]); ri += 1
            while ri < len(R): a(R[ri]); ri += 1
        spin_ge(a, vFA, vFT, sFL, 4, 4)
        for l in reads(0): a(l)
        for c in range(7):
            t = 2*c
            if c == 3: a.comment("STAMP3")
            if c == 6: a.comment("STAMP4")
            R1 = reads(t + 1)
            if c < 6: R1 = [f"ds_read_b32 v{vFT}, v{vFA} offset:{4 + 4*(c+1)}"] + R1
            ri = 0
            M0 = mfmas(t)
            for j in range(NT):
                n = (14 - 2*(j + 1)) + ri
                a(f"s_waitcnt lgkmcnt({min(n, 15)})")
                a(M0[2*j])
                for _ in range(2 if j < 6 else 0):
                    if ri < len(R1): a(R1[ri]); ri += 1
                a(M0[2*j + 1])
                if ri < len(R1) and j < 6: a(R1[ri]); ri += 1
            while ri < len(R1): a(R1[ri]); ri += 1
            M1 = mfmas(t + 1)
            def consumed():
                if c < 2:
                    a(f"""
                    s_mov_b64 exec, 1
                    ds_add_u32 v{vFA}, v{vONE} offset:{32 + 4*c}
                    s_mov_b64 exec, -1
                    """)
            if c == 6:
                inter(M1, [], 0)
            else:
                lslow = a.newlabel("slow"); ljoin = a.newlabel("join")
                a(f"""
                s_waitcnt lgkmcnt(15)
                v_readfirstlane_b32 s{sFL}, v{vFT}
                s_cmp_ge_u32 s{sFL}, 4
                s_cbranch_scc0 {lslow}
                """)
                inter(M1, reads(t + 2), 0)
                if c < 2:
                    consumed()
                    a("s_waitcnt lgkmcnt(0)")
                a(f"s_branch {ljoin}")
                a.label(lslow)
                inter(M1, [], 0)
                consumed()
                spin_ge(a, vFA, vFT, sFL, 4 + 4*(c+1), 4)
                for l in reads(t + 2): a(l)
                a.label(ljoin)
        a("s_nop 7")
    def epi_T0():
        lq = a.newlabel("k1dft")
        a(f"""
        s_cmp_eq_u32 s{sTY}, 3
        s_cbranch_scc1 {lq}
        """)
        for j in range(NT):
            for i in range(2):
                d = ACC + (i*7 + j)*4
                for r in range(4):
                    a(f"v_mul_f32 v{d+r}, s{sSC}, v{d+r}")
                a(f"v_cvt_pk_bf16_f32 v{d}, v{d}, v{d+1}")
                a(f"v_cvt_pk_bf16_f32 v{d+1}, v{d+2}, v{d+3}")
                a(f"buffer_store_dwordx2 v[{d}:{d+1}], v{vEO+j}, s[{WS}:{WS+3}], s{sOB} offen offset:{i*256}")
        a("s_endpgm")
        a.label(lq)
        for j in range(NT):
            for i in range(2):
                d = ACC + (i*7 + j)*4
                a(f"v_cvt_pk_bf16_f32 v{d}, v{d}, v{d+1}")
                a(f"v_cvt_pk_bf16_f32 v{d+1}, v{d+2}, v{d+3}")
                a(f"buffer_store_dword v{d}, v{vEO}, s[{WS}:{WS+3}], s{sOB} offen offset:{i*512}")
                a(f"buffer_store_dword v{d+1}, v{vEO+1}, s[{WS}:{WS+3}], s{sOB} offen offset:{i*512}")
            a(f"s_add_u32 s{sOB}, s{sOB}, {8*X1S}")
        a("s_endpgm")
    def epi_T1():
        for j in range(NT):
            for i in range(2):
                d = ACC + (i*7 + j)*4
                a(f"v_cvt_pk_bf16_f32 v{d}, v{d}, v{d+1}")
                a(f"v_cvt_pk_bf16_f32 v{d+1}, v{d+2}, v{d+3}")
                a(f"buffer_store_dwordx2 v[{d}:{d+1}], v{vEO+j}, s[{WS}:{WS+3}], s{sOB} offen offset:{i*1024}")
        a("s_endpgm")
    a(f"""
    s_cmp_eq_u32 s{sTY}, 2
    s_cbranch_scc1 L_k1_v
    """)
    eo_T0(); mainloop(0); epi_T0()
    a.label("L_k1_v")
    eo_T1(); mainloop(1); epi_T1()
    a.label("L_k1_end")
    a("s_endpgm")
    return a.text(), kdesc(name, NV, 64), f"; @launch kernel={name} grid=(256,1,1) block=(512,1,1) lds={K1_LDS}"
```

```python
from asmlib import *
from layout import *
from tables import FFT_A1, FFT_A2, FFT_TW1, FFT_TW2, FFT_SIZE
import struct, os
EXP = os.environ.get('K2EXP', '')
def f2u(f): return struct.unpack("<I", struct.pack("<f", f))[0]

CH = 16384
NSLOT = 8
NCH = 16
LDS_T = NSLOT * CH
LDS_Y = LDS_T + 32 * 272
LDS_R = LDS_Y + 32 * 272
LDS_C = LDS_R + 64 * 144
K2_LDS = LDS_C + 128

def gen_k2():
    a = Asm()
    name = "k2_kernel"
    a.lines.append(khead(name))
    WS, TB, XS, GW = 4, 8, 12, 16
    sW, sH, sQB, sT0, sT1, sT2, sT3 = 30, 31, 32, 33, 34, 35, 36
    sKVO, sM0, sRT, sKH = 37, 38, 39, 40
    sCNT = 41
    vLANE = 1
    vT0, vT1, vT2, vT3 = 2, 3, 4, 5
    a(f"""
    s_cmp_ge_u32 s2, 256
    s_cbranch_scc1 L_k2_end
    s_load_dwordx2 s[24:25], s[0:1], 72
    s_load_dwordx2 s[26:27], s[0:1], 0
    s_load_dwordx2 s[28:29], s[0:1], 48
    s_getpc_b64 s[20:21]
    s_add_u32 s20, s20, tbl_fft@rel32@lo+4
    s_addc_u32 s21, s21, tbl_fft@rel32@hi+12
    v_and_b32 v{vLANE}, 63, v0
    v_lshrrev_b32 v{vT0}, 6, v0
    s_and_b32 s{sT0}, s2, 7
    s_lshl_b32 s{sT0}, s{sT0}, 1
    v_readfirstlane_b32 s{sW}, v{vT0}
    s_bfe_u32 s{sT1}, s2, 0x10003
    s_add_u32 s{sH}, s{sT0}, s{sT1}
    s_lshr_b32 s{sQB}, s2, 4
    s_waitcnt lgkmcnt(0)
    """)
    srd(a, WS, "s24", "s25", WS_USED)
    srd(a, TB, "s20", "s21", FFT_SIZE)
    srd(a, XS, "s26", "s27", 2048*896)
    srd(a, GW, "s28", "s29", 896)
    a(f"""
    s_cmp_ge_u32 s{sW}, 8
    s_cbranch_scc1 L_k2_fft
    """)
    vDMA, vK, vV, vCA = 6, 7, 8, 9
    vONE, vFL = 14, 15
    sKVB, sFL, sC, sSLOT, sQP = 44, 45, 46, 47, 48
    Q, KF, VF, S, P, O = 16, 32, 48, 64, 96, 112
    QLDS = 7 * CH
    a(f"""
    v_lshlrev_b32 v{vT0}, 4, v{vLANE}
    s_lshl_b32 s{sM0}, s{sW}, 11
    v_add_u32 v{vDMA}, s{sM0}, v{vT0}
    s_lshl_b32 s{sKVO}, s{sH}, 18
    s_add_u32 s{sKVO}, s{sKVO}, {KV}
    s_mov_b32 s{sSLOT}, s{sM0}
    """)
    def dma(tag):
        a(f"s_mov_b32 m0, s{sSLOT}")
        a(f"s_add_u32 s{sSLOT}, s{sSLOT}, {CH}")
        a.vmem(f"buffer_load_dwordx4 v{vDMA}, s[{WS}:{WS+3}], s{sKVO} offen lds", tag)
        a.vmem(f"buffer_load_dwordx4 v{vDMA}, s[{WS}:{WS+3}], s{sKVO} offen offset:1024 lds", tag)
        a(f"s_add_u32 s{sKVO}, s{sKVO}, {CH}")
        a(f"s_and_b32 s{sSLOT}, s{sSLOT}, {NSLOT*CH - 1}")
    dma("c0")
    a(f"""
    s_lshl_b32 s{sT1}, s{sH}, 6
    s_lshl_b32 s{sT0}, s{sQB}, 2
    s_add_u32 s{sT1}, s{sT1}, s{sT0}
    s_lshl_b32 s{sT1}, s{sT1}, 11
    s_lshl_b32 s{sT2}, s{sW}, 10
    s_add_u32 s{sT1}, s{sT1}, s{sT2}
    s_add_u32 m0, s{sT2}, {QLDS}
    s_and_b32 s{sQP}, s{sW}, 1
    """)
    a.vmem(f"buffer_load_dwordx4 v{vT0}, s[{WS}:{WS+3}], s{sT1} offen lds", "q")
    dma("c1")
    a("s_barrier")
    dma("c2"); dma("c3")
    a(f"""
    s_lshr_b32 s{sKH}, s{sW}, 1
    s_lshl_b32 s{sT1}, s{sKH}, 12
    v_add_u32 v{vV}, s{sT1}, v{vT0}
    v_add_u32 v{vK}, {2*CH}, v{vV}
    v_mov_b32 v{vCA}, {LDS_C}
    v_mov_b32 v{vONE}, 1
    v_and_b32 v{vT2}, 31, v{vLANE}
    v_lshlrev_b32 v{vT1}, 2, v{vT2}
    v_add_u32 v{vT1}, {LDS_C}, v{vT1}
    v_mov_b32 v{vT2}, 0
    ds_write_b32 v{vT1}, v{vT2}
    s_lshl_b32 s{sT1}, s{sQP}, 12
    s_add_u32 s{sT1}, s{sT1}, {QLDS}
    v_add_u32 v{vT1}, s{sT1}, v{vT0}
    s_lshl_b32 s{sRT}, s{sQB}, 2
    s_lshl_b32 s{sT1}, s{sQP}, 1
    s_add_u32 s{sRT}, s{sRT}, s{sT1}
    """)
    for r in range(32): a(f"v_mov_b32 v{O+r}, 0")
    for r in range(8): a(f"v_mov_b32 v{P+8+r}, 0")
    for r in range(8): a(f"v_mov_b32 v{VF+8+r}, 0")
    def rd2(dst, base, off):
        for f in range(2):
            a(f"ds_read_b128 {vr(dst + f*4, 4)}, v{base} offset:{off + f*1024}")
    def qk(sb, kb, qb, f):
        d = vr(S + sb*16, 16)
        c = "0" if f == 0 else d
        return f"v_mfma_f32_32x32x16_bf16 {d}, {vr(KF + kb*8 + f*4, 4)}, {vr(Q + qb*8 + f*4, 4)}, {c}"
    def pv(ob, vb, pb, f):
        d = vr(O + ob*16, 16)
        return f"v_mfma_f32_32x32x16_bf16 {d}, {vr(VF + vb*8 + f*4, 4)}, {vr(P + pb*8 + f*4, 4)}, {d}"
    a.wait_vm(["c0", "q", "c1"], "lgkmcnt(0)")
    a("s_barrier")
    rd2(KF, vV, 0)
    rd2(Q, vT1, 0); rd2(Q + 8, vT1, 2048)
    dma("c4"); dma("c5")
    a(f"""
    s_mov_b32 s{sC}, 0
    s_waitcnt lgkmcnt(0)
    """)
    a(qk(0, 0, 0, 0)); a(qk(0, 0, 0, 1))
    a("s_nop 7")
    a.vm = []; a.lg = []
    def trip(kind):
        lab = f"L_k2_loop{kind}"
        a(".p2align 6")
        a.label(lab)
        if "trips" in EXP and kind == 0:
            for T, st in ((0, 0), (1, 2), (2, 3), (4, 4)):
                l = a.newlabel("st")
                a(f"s_cmp_lg_u32 s{sC}, {T}")
                a(f"s_cbranch_scc1 {l}")
                a.label(l)
        for it in range(4):
            par = it % 2
            if it == 0:
                rd2(KF + 8, vV, CH); rd2(VF, vV, 2048)
            elif it == 2:
                a(f"""
                s_cmp_ge_u32 s{sFL}, 8
                s_cbranch_scc0 L_k2_spin{kind}
                L_k2_flagok{kind}:
                """)
                rd2(KF, vK, 0); rd2(VF + 8, vV, CH + 2048)
            elif it == 1:
                a("s_waitcnt lgkmcnt(1)")
            else:
                a("s_waitcnt lgkmcnt(0)")
            s0 = S + par*16; p0 = P + par*8
            e = [f"v_exp_f32 v{s0+k}, v{s0+k}" for k in range(16)]
            cv = [f"v_cvt_pk_bf16_f32 v{p0+k}, v{s0+2*k}, v{s0+2*k+1}" for k in range(8)]
            kb = [0, 1, 1, 0][it]; vb = [1, 0, 0, 1][it]
            m = [qk(1-par, kb, 1-par, 0), pv(1-par, vb, 1-par, 0), qk(1-par, kb, 1-par, 1), pv(1-par, vb, 1-par, 1)]
            for g in range(4):
                a(e[4*g])
                a(m[g])
                a(e[4*g+1]); a(e[4*g+2]); a(e[4*g+3])
                a(cv[2*g]); a(cv[2*g+1])
                if it == 0 and g == 3:
                    a(f"""
                    s_waitcnt vmcnt({4 if kind == 0 else 0})
                    s_mov_b64 exec, 1
                    ds_add_u32 v{vCA}, v{vONE}
                    s_mov_b64 exec, -1
                    """)
                if it == 1 and g == 1:
                    a(f"ds_read_b32 v{vFL}, v{vCA}")
                if it == 1 and g == 3:
                    a(f"""
                    s_waitcnt lgkmcnt(0)
                    v_readfirstlane_b32 s{sFL}, v{vFL}
                    """)
                if kind == 0 and it >= 2 and g == 1:
                    dma("x")
                if it == 3 and g == 2:
                    a(f"""
                    v_mov_b32 v{vV}, v{vK}
                    v_add_u32 v{vK}, {2*CH}, v{vK}
                    v_and_b32 v{vK}, {NSLOT*CH - 1}, v{vK}
                    v_add_u32 v{vCA}, 4, v{vCA}
                    s_add_u32 s{sC}, s{sC}, 1
                    """)
        a(f"""
        s_cmp_lt_u32 s{sC}, {5 if kind == 0 else 8}
        s_cbranch_scc1 {lab}
        """)
    def spin(kind):
        a(f"""
        L_k2_spin{kind}:
        s_sleep 1
        ds_read_b32 v{vFL}, v{vCA}
        s_waitcnt lgkmcnt(0)
        v_readfirstlane_b32 s{sFL}, v{vFL}
        s_cmp_ge_u32 s{sFL}, 8
        s_cbranch_scc0 L_k2_spin{kind}
        s_branch L_k2_flagok{kind}
        """)
    trip(0)
    trip(1)
    a("s_branch L_k2_loopdone")
    spin(0); spin(1)
    a.label("L_k2_loopdone")
    a.vm = []; a.lg = []
    a(pv(1, 1, 1, 0)); a(pv(1, 1, 1, 1))
    a(f"""
    s_mul_i32 s{sT0}, s{sQP}, {6*4096}
    v_lshlrev_b32 v{vT0}, 4, v{vLANE}
    v_add_u32 v{vT0}, s{sT0}, v{vT0}
    s_lshl_b32 s{sT0}, s{sQP}, 3
    s_add_u32 s{sT0}, s{sT0}, {LDS_C + 112}
    v_mov_b32 v{vCA}, s{sT0}
    s_cmp_ge_u32 s{sKH}, 2
    s_cbranch_scc1 L_k2_send2
    s_cmp_eq_u32 s{sKH}, 1
    s_cbranch_scc1 L_k2_own1
    """)
    def send(X, base, off):
        for r in range(4):
            a(f"ds_write_b128 v{base}, {vr(O + X*16 + 4*r, 4)} offset:{off + X*3*4096 + r*1024}")
    def signal(Xs):
        a("s_waitcnt lgkmcnt(0)")
        a("s_mov_b64 exec, 1")
        for X in Xs: a(f"ds_add_u32 v{vCA}, v{vONE} offset:{4*X}")
        a("s_mov_b64 exec, -1")
    vOO = 10
    def own(X):
        a("s_nop 7")
        send(1 - X, vT0, 0)
        signal([1 - X])
        a(f"""
        v_lshrrev_b32 v{vT1}, 5, v{vLANE}
        s_mul_i32 s{sT1}, s{sH}, 7
        v_add_u32 v{vT1}, s{sT1}, v{vT1}
        v_and_b32 v{vT2}, 1, v{vT1}
        v_lshrrev_b32 v{vT1}, 1, v{vT1}
        v_lshlrev_b32 v{vT1}, 9, v{vT1}
        v_lshl_add_u32 v{vT1}, v{vT2}, 3, v{vT1}
        v_and_b32 v{vT2}, 31, v{vLANE}
        v_lshl_add_u32 v{vOO}, v{vT2}, 4, v{vT1}
        v_mov_b32 v{vT2}, 0x7fffffff
        v_cmp_gt_u32 vcc, 32, v{vLANE}
        s_add_u32 s{sRT}, s{sRT}, {X}
        s_mul_i32 s{sT1}, s{sRT}, 28672
        s_add_u32 s{sT1}, s{sT1}, {OF}
        v_cndmask_b32 v{vOO+1}, v{vT2}, v{vOO}, vcc
        """)
        if X == 1:
            for r in range(8): a(f"v_mov_b32 v{Q+r}, v{Q+8+r}")
        a(f"""
        L_k2_pairwait{X}:
        ds_read_b32 v{vFL}, v{vCA} offset:{4*X}
        s_waitcnt lgkmcnt(0)
        v_readfirstlane_b32 s{sFL}, v{vFL}
        s_cmp_eq_u32 s{sFL}, 3
        s_cbranch_scc1 L_k2_pairok{X}
        s_sleep 1
        s_branch L_k2_pairwait{X}
        L_k2_pairok{X}:
        """)
        TMP = KF
        for n in range(3):
            for r in range(4):
                a(f"ds_read_b128 {vr(TMP + n*16 + 4*r, 4)}, v{vT0} offset:{(X*3 + n)*4096 + r*1024}")
        a("s_waitcnt lgkmcnt(8)")
        for r in range(16): a(f"v_add_f32 v{O+r}, v{O+X*16+r}, v{TMP+r}")
        a("s_waitcnt lgkmcnt(0)")
        for r in range(16): a(f"v_add_f32 v{TMP+16+r}, v{TMP+16+r}, v{TMP+32+r}")
        for r in range(16): a(f"v_add_f32 v{O+r}, v{O+r}, v{TMP+16+r}")
        a(f"s_mov_b32 s{sKH}, 0")
    a.label("L_k2_own0")
    own(0)
    a("s_branch L_k2_final")
    a.label("L_k2_send2")
    a(f"""
    s_sub_u32 s{sT0}, s{sKH}, 1
    s_lshl_b32 s{sT0}, s{sT0}, 12
    v_add_u32 v{vT0}, s{sT0}, v{vT0}
    s_nop 7
    """)
    send(0, vT0, 0); send(1, vT0, 0)
    signal([0, 1])
    a("s_waitcnt lgkmcnt(0)")
    a("s_endpgm")
    a.label("L_k2_own1")
    own(1)
    a.label("L_k2_final")
    vL, vL2, vC = 14, 15, vT3
    a(f"""
    v_mov_b32 v{vL}, v{O+12}
    v_mov_b32 v{vL2}, v{O+12}
    v_mov_b32 v{vC}, 0
    s_nop 1
    v_permlane32_swap_b32 v{vL}, v{vL2}
    """)
    for r in range(12):
        a(f"v_fma_f32 v{vC}, v{O+r}, 0, v{vC}")
    a(f"""
    v_mov_b32 v{vT2}, 0
    v_fma_f32 v{vT2}, v{O+12}, 0, v{vT2}
    v_fma_f32 v{vT2}, v{O+13}, 0, v{vT2}
    v_fma_f32 v{vT2}, v{O+14}, 0, v{vT2}
    v_fma_f32 v{vT2}, v{O+15}, 0, v{vT2}
    v_cmp_gt_u32 vcc, 32, v{vLANE}
    v_rcp_f32 v{vL}, v{vL2}
    s_nop 0
    v_cndmask_b32 v{vT2}, 0, v{vT2}, vcc
    v_add_f32 v{vC}, v{vC}, v{vT2}
    v_add_f32 v{vC}, v{vC}, v{vL2}
    s_cmp_eq_u32 s{sKH}, 2
    s_cbranch_scc1 L_k2_store
    v_mov_b32 v{vT2}, {f2u(2.0**-24)}
    v_cmp_ngt_f32 vcc, v{vC}, v{vT2}
    v_mov_b32 v{vT2}, {f2u(2.0**40)}
    v_cmp_nlt_f32 s[{sT2}:{sT2+1}], v{vC}, v{vT2}
    """.replace(f"s[{sT2}:{sT2+1}]", "s[42:43]"))
    a(f"""
    s_or_b64 vcc, vcc, s[42:43]
    s_cbranch_vccnz L_k2_fallback
    """)
    a.label("L_k2_store")
    for r in range(16):
        a(f"v_mul_f32 v{O+r}, v{O+r}, v{vL}")
    for qd in range(4):
        a(f"v_cvt_pk_bf16_f32 v{O+4*qd}, v{O+4*qd}, v{O+4*qd+1}")
        a(f"v_cvt_pk_bf16_f32 v{O+4*qd+1}, v{O+4*qd+2}, v{O+4*qd+3}")
        vo = vOO + 1 if qd == 3 else vOO
        a(f"buffer_store_dwordx2 {vr(O+4*qd, 2)}, v{vo}, s[{WS}:{WS+3}], s{sT1} offen offset:{qd*512}")
    a("s_endpgm")
    a.label("L_k2_fallback")
    vM, vMN, vAL = 6, 7, 8
    a(f"""
    s_mov_b32 s{sKH}, 2
    s_lshl_b32 s{sKVO}, s{sH}, 18
    s_add_u32 s{sKVO}, s{sKVO}, {KV}
    v_lshlrev_b32 v{vT0}, 4, v{vLANE}
    v_mov_b32 v{vM}, 0xff800000
    s_mov_b32 s{sCNT}, 0
    """)
    for r in range(16): a(f"v_mov_b32 v{O+r}, 0")
    a.label("L_k2_fbloop")
    for f in range(4):
        dst = (KF + f*4) if f < 2 else (VF + (f-2)*4)
        a(f"buffer_load_dwordx4 {vr(dst,4)}, v{vT0}, s[{WS}:{WS+3}], s{sKVO} offen offset:{f*1024}")
    a(f"""
    s_waitcnt vmcnt(0)
    v_mfma_f32_32x32x16_bf16 {vr(S,16)}, {vr(KF,4)}, {vr(Q,4)}, 0
    v_mfma_f32_32x32x16_bf16 {vr(S,16)}, {vr(KF+4,4)}, {vr(Q+4,4)}, {vr(S,16)}
    s_nop 15
    s_nop 3
    v_mov_b32 v{vMN}, v{vM}
    """)
    for r in range(0, 16, 2):
        a(f"v_max3_f32 v{vMN}, v{S+r}, v{S+r+1}, v{vMN}")
    a(f"""
    v_mov_b32 v{vT1}, v{vMN}
    v_mov_b32 v{vT2}, v{vMN}
    s_nop 1
    v_permlane32_swap_b32 v{vT1}, v{vT2}
    s_nop 1
    v_max3_f32 v{vMN}, v{vMN}, v{vT1}, v{vT2}
    v_sub_f32 v{vAL}, v{vM}, v{vMN}
    v_exp_f32 v{vAL}, v{vAL}
    v_mov_b32 v{vM}, v{vMN}
    """)
    for r in range(16):
        a(f"v_sub_f32 v{S+r}, v{S+r}, v{vMN}")
        a(f"v_exp_f32 v{S+r}, v{S+r}")
    for r in range(16):
        a(f"v_mul_f32 v{O+r}, v{O+r}, v{vAL}")
    for k in range(8):
        a(f"v_cvt_pk_bf16_f32 v{P+k}, v{S+2*k}, v{S+2*k+1}")
    a(f"""
    s_nop 1
    v_mfma_f32_32x32x16_bf16 {vr(O,16)}, {vr(VF,4)}, {vr(P,4)}, {vr(O,16)}
    v_mfma_f32_32x32x16_bf16 {vr(O,16)}, {vr(VF+4,4)}, {vr(P+4,4)}, {vr(O,16)}
    s_add_u32 s{sKVO}, s{sKVO}, 4096
    s_add_u32 s{sCNT}, s{sCNT}, 1
    s_nop 15
    s_nop 3
    s_cmp_lt_u32 s{sCNT}, 64
    s_cbranch_scc1 L_k2_fbloop
    s_branch L_k2_final
    """)

    a.label("L_k2_fft")
    a.vm = []; a.lg = []
    sFW, sK, sSL, sMT1, sNT2 = 37, 38, 39, 40, 41
    B1, A1, TW1, TW2, A2, WR, ACC, B2 = 16, 32, 48, 64, 80, 112, 120, 136
    PK = 16
    vL16, vA, vB, vC2 = 6, 7, 8, 9
    def fsync(n):
        lsp = a.newlabel("k2fs"); lok = a.newlabel("k2fo")
        a(f"""
        s_waitcnt lgkmcnt(0)
        v_mov_b32 v{vA}, {LDS_C}
        v_mov_b32 v{vB}, 1
        s_mov_b64 exec, 1
        ds_add_u32 v{vA}, v{vB} offset:{96 + 4*n}
        s_mov_b64 exec, -1
        """)
        a.label(lsp)
        a(f"""
        ds_read_b32 v{vB}, v{vA} offset:{96 + 4*n}
        s_waitcnt lgkmcnt(0)
        v_readfirstlane_b32 s45, v{vB}
        s_cmp_ge_u32 s45, 4
        s_cbranch_scc1 {lok}
        s_sleep 1
        s_branch {lsp}
        """)
        a.label(lok)
    a(f"""
    {'s_setprio 3' if 'prio' in EXP else ''}
    s_sub_u32 s{sFW}, s{sW}, 8
    v_lshlrev_b32 v{vL16}, 4, v{vLANE}
    s_barrier
    s_barrier
    {"s_endpgm" if "nofft" in EXP else ""}
    """)
    def prefetch(track):
        a(f"""
        s_load_dwordx2 s[50:51], s[0:1], 40
        s_getpc_b64 s[52:53]
        s_add_u32 s52, s52, tbl_gf@rel32@lo+4
        s_addc_u32 s53, s53, tbl_gf@rel32@hi+12
        s_getpc_b64 s[54:55]
        s_add_u32 s54, s54, k3_kernel@rel32@lo+4
        s_addc_u32 s55, s55, k3_kernel@rel32@hi+12
        s_lshr_b32 s{sT0}, s2, 3
        s_lshl_b32 s{sT0}, s{sT0}, 2
        s_add_u32 s{sT0}, s{sT0}, s{sFW}
        s_mul_i32 s{sT0}, s{sT0}, 3136
        v_lshlrev_b32 v{vA}, 7, v{vLANE}
        v_min_u32 v{vB}, 3200, v{vA}
        s_waitcnt lgkmcnt(0)
        """)
        srd(a, 56, "s50", "s51", 448*896)
        srd(a, 60, "s52", "s53", 448*896)
        a.vmem(f"buffer_load_dword v{vC2}, v{vB}, s[56:59], s{sT0} offen", "pf")
        a.vmem(f"buffer_load_dword v{vC2}, v{vB}, s[60:63], s{sT0} offen", "pf")
        srd(a, 56, "s54", "s55", "L_k3_end-k3_kernel")
        a.vmem(f"buffer_load_dword v{vC2}, v{vA}, s[56:59], 0 offen", "pf")
    a(f"""
    s_cmp_ge_u32 s2, 225
    s_cbranch_scc1 L_k2_pfonly
    s_lshr_b32 s{sMT1}, s{sFW}, 1
    s_and_b32 s{sNT2}, s{sFW}, 1
    s_cmp_eq_u32 s2, 224
    s_cselect_b32 s{sSL}, 0, s2
    s_mul_i32 s{sT0}, s{sSL}, {X1S}
    s_lshl_b32 s{sT1}, s{sNT2}, 12
    s_add_u32 s{sT0}, s{sT0}, s{sT1}
    s_add_u32 s{sT0}, s{sT0}, {X1F}
    s_lshl_b32 s{sT1}, s{sMT1}, 12
    s_lshl_b32 s{sT2}, s{sFW}, 12
    s_add_u32 s{sT3}, s{sT2}, {FFT_TW1}
    """)
    for ks in range(4):
        a.vmem(f"buffer_load_dwordx4 {vr(B1+4*ks,4)}, v{vL16}, s[{WS}:{WS+3}], s{sT0} offen offset:{ks*1024}", "b1")
    for ks in range(4):
        a.vmem(f"buffer_load_dwordx4 {vr(A1+4*ks,4)}, v{vL16}, s[{TB}:{TB+3}], s{sT1} offen offset:{ks*1024}", "a1")
    for i in range(4):
        a.vmem(f"buffer_load_dwordx4 {vr(TW1+4*i,4)}, v{vL16}, s[{TB}:{TB+3}], s{sT3} offen offset:{i*1024}", "tw1")
    a(f"""
    s_lshl_b32 s{sT1}, s{sFW}, 13
    s_add_u32 s{sT1}, s{sT1}, {FFT_A2}
    s_add_u32 s{sT0}, s{sT1}, 4096
    s_add_u32 s{sT3}, s{sT2}, {FFT_TW2}
    """)
    for ks in range(8):
        so = sT1 if ks < 4 else sT0
        a.vmem(f"buffer_load_dwordx4 {vr(A2+4*ks,4)}, v{vL16}, s[{TB}:{TB+3}], s{so} offen offset:{(ks%4)*1024}", "a2")
    a(f"""
    v_and_b32 v{vT0}, 31, v{vLANE}
    v_lshrrev_b32 v{vT1}, 5, v{vLANE}
    v_lshlrev_b32 v{vT2}, 10, v{vT1}
    v_lshl_add_u32 v{vT2}, v{vT0}, 2, v{vT2}
    s_mul_i32 s{sT0}, s2, {WFS}
    s_lshl_b32 s{sT1}, s{sFW}, 11
    s_add_u32 s{sT0}, s{sT0}, s{sT1}
    s_add_u32 s{sT0}, s{sT0}, {WF}
    """)
    for p in range(8):
        a.vmem(f"buffer_load_dword v{WR+p}, v{vT2}, s[{WS}:{WS+3}], s{sT0} offen offset:{p*128}", "w")
    for i in range(4):
        a.vmem(f"buffer_load_dwordx4 {vr(TW2+4*i,4)}, v{vL16}, s[{TB}:{TB+3}], s{sT3} offen offset:{i*1024}", "tw2")
    if "nopf" not in EXP: prefetch(1)
    vW1, vR2, vWY, vW3, vR4, vZO = 10, 11, 12, 13, 14, 15
    a(f"""
    v_mul_u32_u24 v{vT2}, {8*272}, v{vT1}
    v_lshl_add_u32 v{vT2}, v{vT0}, 2, v{vT2}
    s_mul_i32 s{sT0}, s{sMT1}, {16*272}
    s_lshl_b32 s{sT1}, s{sNT2}, 7
    s_add_u32 s{sT0}, s{sT0}, s{sT1}
    s_add_u32 s{sT0}, s{sT0}, {LDS_T}
    v_add_u32 v{vW1}, s{sT0}, v{vT2}
    v_mul_u32_u24 v{vT2}, 272, v{vT0}
    v_lshl_add_u32 v{vT3}, v{vT1}, 4, v{vT2}
    v_add_u32 v{vR2}, {LDS_T}, v{vT3}
    v_lshl_add_u32 v{vT3}, v{vT1}, 5, v{vT2}
    s_lshl_b32 s{sT0}, s{sFW}, 6
    s_add_u32 s{sT0}, s{sT0}, {LDS_Y}
    v_add_u32 v{vWY}, s{sT0}, v{vT3}
    v_mul_u32_u24 v{vT2}, {8*144}, v{vT1}
    v_lshl_add_u32 v{vT2}, v{vT0}, 2, v{vT2}
    s_mul_i32 s{sT0}, s{sFW}, {16*144}
    s_add_u32 s{sT0}, s{sT0}, {LDS_R}
    v_add_u32 v{vW3}, s{sT0}, v{vT2}
    v_mul_u32_u24 v{vT2}, 144, v{vT0}
    v_lshl_add_u32 v{vT2}, v{vT1}, 4, v{vT2}
    s_mul_i32 s{sT0}, s{sNT2}, {32*144}
    s_add_u32 s{sT0}, s{sT0}, {LDS_R}
    v_add_u32 v{vR4}, s{sT0}, v{vT2}
    v_lshlrev_b32 v{vT2}, 4, v{vT0}
    v_lshl_add_u32 v{vZO}, v{vT1}, 10, v{vT2}
    """)
    a.wait_vm(["b1", "a1"])
    a(f"""
    s_cmp_eq_u32 s2, 0
    s_cbranch_scc1 L_k2_sp0
    s_cmp_eq_u32 s2, 224
    s_cbranch_scc0 L_k2_spdone
    """)
    for r in range(16): a(f"v_lshrrev_b32 v{B1+r}, 16, v{B1+r}")
    a("s_branch L_k2_spdone")
    a.label("L_k2_sp0")
    for r in range(16): a(f"v_and_b32 v{B1+r}, 0xffff, v{B1+r}")
    a.label("L_k2_spdone")
    a("s_nop 1")
    def mm(A, B, n):
        for ks in range(n):
            c = "0" if ks == 0 else vr(ACC, 16)
            a(f"v_mfma_f32_32x32x16_bf16 {vr(ACC,16)}, {vr(A+4*ks,4)}, {vr(B+4*ks,4)}, {c}")
    def cmul_tw(TW):
        for p in range(8):
            ar, ai, tr, ti = ACC+2*p, ACC+2*p+1, TW+2*p, TW+2*p+1
            a(f"""
            v_mul_f32 v{vT2}, v{ar}, v{tr}
            v_mul_f32 v{vT3}, v{ar}, v{ti}
            v_fma_f32 v{vT2}, -v{ai}, v{ti}, v{vT2}
            v_fmac_f32 v{vT3}, v{ai}, v{tr}
            v_cvt_pk_bf16_f32 v{PK+p}, v{vT2}, v{vT3}
            """)
    mm(A1, B1, 4)
    a.wait_vm("tw1")
    a("s_nop 15")
    cmul_tw(TW1)
    for p in range(8):
        a(f"ds_write_b32 v{vW1}, v{PK+p} offset:{p*272}")
    fsync(0)
    for ks in range(8):
        a.lds(f"ds_read_b128 {vr(B2+4*ks,4)}, v{vR2} offset:{ks*32}", f"b2_{ks}")
    a.wait_vm("a2")
    for ks in range(8):
        a.wait_lg(f"b2_{ks}")
        c = "0" if ks == 0 else vr(ACC, 16)
        a(f"v_mfma_f32_32x32x16_bf16 {vr(ACC,16)}, {vr(A2+4*ks,4)}, {vr(B2+4*ks,4)}, {c}")
    a.wait_vm("w")
    for p in range(8):
        a(f"v_lshlrev_b32 v{TW1+2*p}, 16, v{WR+p}")
        a(f"v_and_b32 v{TW1+2*p+1}, 0xffff0000, v{WR+p}")
    for p in range(8):
        ar, ai, tr, ti = ACC+2*p, ACC+2*p+1, TW1+2*p, TW1+2*p+1
        a(f"""
        v_mul_f32 v{vT2}, v{ar}, v{tr}
        v_mul_f32 v{vT3}, v{ar}, v{ti}
        v_fma_f32 v{vT2}, -v{ai}, v{ti}, v{vT2}
        v_fmac_f32 v{vT3}, v{ai}, v{tr}
        v_cvt_pk_bf16_f32 v{PK+p}, v{vT2}, -v{vT3}
        """)
    a(f"""
    ds_write_b128 v{vWY}, {vr(PK,4)}
    ds_write_b128 v{vWY}, {vr(PK+4,4)} offset:16
    """)
    fsync(1)
    for ks in range(8):
        a.lds(f"ds_read_b128 {vr(B2+4*ks,4)}, v{vR2} offset:{ks*32 + (LDS_Y-LDS_T)}", f"b3_{ks}")
    for ks in range(8):
        a.wait_lg(f"b3_{ks}")
        c = "0" if ks == 0 else vr(ACC, 16)
        a(f"v_mfma_f32_32x32x16_bf16 {vr(ACC,16)}, {vr(A2+4*ks,4)}, {vr(B2+4*ks,4)}, {c}")
    a.wait_vm("tw2")
    a("s_nop 15")
    cmul_tw(TW2)
    for p in range(8):
        a(f"ds_write_b32 v{vW3}, v{PK+p} offset:{p*144}")
    fsync(2)
    for ks in range(4):
        a.lds(f"ds_read_b128 {vr(B2+4*ks,4)}, v{vR4} offset:{ks*32}", f"b4_{ks}")
    for ks in range(4):
        a.wait_lg(f"b4_{ks}")
        c = "0" if ks == 0 else vr(ACC, 16)
        a(f"v_mfma_f32_32x32x16_bf16 {vr(ACC,16)}, {vr(A1+4*ks,4)}, {vr(B2+4*ks,4)}, {c}")
    a(f"""
    s_mul_i32 s{sT0}, s2, {2*ZTS}
    s_cmp_eq_u32 s2, 224
    s_cselect_b32 s{sT0}, {ZTS}, s{sT0}
    s_lshl_b32 s{sT1}, s{sNT2}, 9
    s_add_u32 s{sT0}, s{sT0}, s{sT1}
    s_lshl_b32 s{sT1}, s{sMT1}, 11
    s_add_u32 s{sT0}, s{sT0}, s{sT1}
    s_add_u32 s{sT0}, s{sT0}, {ZT}
    s_add_u32 s{sT1}, s{sT0}, {ZTS}
    s_nop 7
    """)
    for q in range(4):
        a(f"v_cvt_pk_bf16_f32 v{PK+q}, v{ACC+4*q}, v{ACC+4*q+2}")
        a(f"v_cvt_pk_bf16_f32 v{PK+4+q}, -v{ACC+4*q+1}, -v{ACC+4*q+3}")
    a(f"""
    buffer_store_dwordx4 {vr(PK,4)}, v{vZO}, s[{WS}:{WS+3}], s{sT0} offen
    s_cmp_eq_u32 s{sSL}, 0
    s_cbranch_scc1 L_k2_gate
    buffer_store_dwordx4 {vr(PK+4,4)}, v{vZO}, s[{WS}:{WS+3}], s{sT1} offen
    """)
    a.label("L_k2_gate")
    a("s_endpgm")
    a.label("L_k2_pfonly")
    if "nopf" not in EXP: prefetch(0)
    a("s_endpgm")
    a.label("L_k2_end")
    a("s_endpgm")
    return a.text(), kdesc(name, 168, 64), f"; @launch kernel={name} grid=(256,1,1) block=(768,1,1) lds={K2_LDS}"
```

```python
from asmlib import *
from layout import *
from k1 import spin_ge
import os
EXP = os.environ.get('K3EXP', '')
DEPTH = int(os.environ.get('K3DEPTH', '4'))

SLOT = 16384
NSLOT = 9
NCH = 14
LDS_F = SLOT * NSLOT
K3_LDS = LDS_F + 128

def gen_k3():
    a = Asm()
    name = "k3_kernel"
    a.lines.append(khead(name))
    WS, WO, GF, OUT = 4, 8, 12, 16
    sW, sRB, sCT, sT0, sT1, sT2, sT3, sJ, sFL = 30, 31, 32, 33, 34, 35, 36, 37, 38
    vLANE = 1
    vT0, vT1, vT2, vT3 = 2, 3, 4, 5
    vFA, vFT, vONE, vL16 = 6, 7, 8, 9
    a(f"""
    s_cmp_ge_u32 s2, 224
    s_cbranch_scc1 L_k3_end
    s_load_dwordx2 s[24:25], s[0:1], 72
    s_load_dwordx2 s[26:27], s[0:1], 40
    s_load_dwordx2 s[28:29], s[0:1], 56
    s_getpc_b64 s[20:21]
    s_add_u32 s20, s20, tbl_gf@rel32@lo+4
    s_addc_u32 s21, s21, tbl_gf@rel32@hi+12
    v_and_b32 v{vLANE}, 63, v0
    v_lshrrev_b32 v{vT0}, 6, v0
    s_and_b32 s{sT0}, s2, 7
    s_lshr_b32 s{sT1}, s2, 3
    v_readfirstlane_b32 s{sW}, v{vT0}
    s_lshl_b32 s{sRB}, s{sT0}, 2
    s_and_b32 s{sT2}, s{sT1}, 3
    s_add_u32 s{sRB}, s{sRB}, s{sT2}
    s_lshr_b32 s{sCT}, s{sT1}, 2
    s_and_b32 s{sJ}, s{sW}, 3
    v_lshlrev_b32 v{vL16}, 4, v{vLANE}
    v_mov_b32 v{vFA}, {LDS_F}
    v_mov_b32 v{vONE}, 1
    s_cmp_ge_u32 s{sW}, 4
    s_cbranch_scc0 L_k3_compute
    """)
    vTO, vTF = 10, 11
    sCC, sM0T, sM0D = 40, 41, 42
    sWOb, sZTb, sOFb, sGFb = 43, 44, 45, 46
    a(f"""
    v_lshrrev_b32 v{vT0}, 3, v{vLANE}
    v_and_b32 v{vT1}, 7, v{vLANE}
    v_bfe_u32 v{vT2}, v{vLANE}, 4, 1
    v_lshlrev_b32 v{vT2}, 2, v{vT2}
    v_xor_b32 v{vT1}, v{vT1}, v{vT2}
    v_lshlrev_b32 v{vT1}, 4, v{vT1}
    v_mul_u32_u24 v{vT2}, 896, v{vT0}
    v_add_u32 v{vTO}, v{vT2}, v{vT1}
    v_mul_u32_u24 v{vT2}, {ZTS}, v{vT0}
    v_add_u32 v{vTF}, v{vT2}, v{vT1}
    s_lshl_b32 s{sM0T}, s{sJ}, 11
    s_add_u32 s{sM0D}, s{sM0T}, 8192
    s_mul_i32 s{sWOb}, s{sJ}, {16*896}
    s_lshl_b32 s{sT0}, s{sCT}, 7
    s_add_u32 s{sWOb}, s{sWOb}, s{sT0}
    s_mul_i32 s{sZTb}, s{sJ}, {16*ZTS}
    s_lshl_b32 s{sT0}, s{sRB}, 7
    s_add_u32 s{sZTb}, s{sZTb}, s{sT0}
    s_add_u32 s{sZTb}, s{sZTb}, {ZT}
    s_lshr_b32 s{sT0}, s{sJ}, 1
    s_and_b32 s{sT1}, s{sJ}, 1
    s_lshl_b32 s{sT1}, s{sT1}, 11
    s_lshl_b32 s{sT2}, s{sRB}, 1
    s_add_u32 s{sT2}, s{sT2}, s{sT0}
    s_mul_i32 s{sOFb}, s{sT2}, 28672
    s_add_u32 s{sOFb}, s{sOFb}, s{sT1}
    s_add_u32 s{sOFb}, s{sOFb}, {OF}
    s_lshl_b32 s{sT2}, s{sCT}, 1
    s_add_u32 s{sT2}, s{sT2}, s{sT0}
    s_mul_i32 s{sGFb}, s{sT2}, 28672
    s_add_u32 s{sGFb}, s{sGFb}, s{sT1}
    s_mov_b32 s{sCC}, {"0" if "norot" in EXP else "s" + str(sCT)}
    """)
    a("s_waitcnt lgkmcnt(0)")
    srd(a, WS, "s24", "s25", WS_USED)
    srd(a, WO, "s26", "s27", 448*896)
    srd(a, GF, "s20", "s21", 14*28672)
    def issue(i):
        slot = (i % NSLOT) * SLOT
        br = i & 1
        tag = f"c{i}"
        rs = 896 if br == 0 else ZTS
        a(f"""
        s_mul_i32 s{sT0}, s{sCC}, {64*rs}
        s_add_u32 s{sT0}, s{sT0}, s{sWOb if br == 0 else sZTb}
        s_add_u32 m0, s{sM0T}, {slot}
        s_lshl_b32 s{sT1}, s{sCC}, 12
        """)
        T = WO if br == 0 else WS; D = WS if br == 0 else GF
        vT = vTO if br == 0 else vTF
        a.vmem(f"buffer_load_dwordx4 v{vT}, s[{T}:{T+3}], s{sT0} offen lds", tag)
        a(f"s_add_u32 m0, s{sM0T}, {slot + 1024}")
        a(f"s_add_u32 s{sT0}, s{sT0}, {8*rs}")
        a.vmem(f"buffer_load_dwordx4 v{vT}, s[{T}:{T+3}], s{sT0} offen lds", tag)
        a(f"s_add_u32 m0, s{sM0D}, {slot}")
        a(f"s_add_u32 s{sT1}, s{sT1}, s{sOFb if br == 0 else sGFb}")
        a.vmem(f"buffer_load_dwordx4 v{vL16}, s[{D}:{D+3}], s{sT1} offen lds", tag)
        a.vmem(f"buffer_load_dwordx4 v{vL16}, s[{D}:{D+3}], s{sT1} offen offset:1024 lds", tag)
        if br == 1:
            a(f"""
            s_add_u32 s{sCC}, s{sCC}, 1
            s_cmp_eq_u32 s{sCC}, 7
            s_cselect_b32 s{sCC}, 0, s{sCC}
            """)
    issue(0)
    a("s_barrier")
    for i in range(1, DEPTH): issue(i)
    for i in range(NCH):
        a.wait_vm(f"c{i}")
        a(f"""
        s_mov_b64 exec, 1
        ds_add_u32 v{vFA}, v{vONE} offset:{4*i}
        s_mov_b64 exec, -1
        """)
        if i == 0: a.comment("STAMP2")
        if i == 6: a.comment("STAMP3")
        if i == 13: a.comment("STAMP4")
        n = i + DEPTH
        if n < NCH:
            if n >= NSLOT: spin_ge(a, vFA, vFT, sFL, 64 + 4*(n - NSLOT + 1), 4)
            issue(n)
    a("s_waitcnt lgkmcnt(0)")
    a("s_endpgm")

    a.label("L_k3_compute")
    a.vm = []; a.lg = []
    vRT = [10, 11]
    vRD = [12, 13]
    vA0, vA1, vG, vOO = 14, 15, 16, 18
    FR, ACC = 24, 88
    NV = 120
    sC2, sTT = 40, 41
    a(f"""
    v_and_b32 v{vT0}, 31, v{vLANE}
    v_lshl_add_u32 v{vT1}, v{vT0}, 2, v{vFA}
    v_cmp_eq_u32 vcc, 14, v{vT0}
    v_mov_b32 v{vT2}, 0
    v_mov_b32 v{vT3}, 4
    v_cndmask_b32 v{vT2}, v{vT2}, v{vT3}, vcc
    ds_write_b32 v{vT1}, v{vT2}
    s_lshr_b32 s{sC2}, s{sW}, 1
    s_and_b32 s{sTT}, s{sW}, 1
    v_lshrrev_b32 v{vT1}, 5, v{vLANE}
    v_bfe_u32 v{vT2}, v{vLANE}, 2, 2
    v_lshl_add_u32 v{vT3}, v{vT1}, 3, v{vT2}
    v_lshlrev_b32 v{vT3}, 7, v{vT3}
    v_lshrrev_b32 v{vT2}, 1, v{vT2}
    v_lshl_add_u32 v{vT3}, v{vT2}, 6, v{vT3}
    v_bfe_u32 v{vT2}, v{vLANE}, 4, 1
    v_lshl_add_u32 v{vT3}, v{vT2}, 5, v{vT3}
    v_and_b32 v{vT2}, 3, v{vLANE}
    v_lshl_add_u32 v{vT3}, v{vT2}, 3, v{vT3}
    s_lshl_b32 s{sT0}, s{sC2}, 6
    v_xor_b32 v{vRT[0]}, s{sT0}, v{vT3}
    s_lshl_b32 s{sT0}, s{sTT}, 6
    v_xor_b32 v{vRT[1]}, s{sT0}, v{vT3}
    s_lshl_b32 s{sT0}, s{sTT}, 12
    s_add_u32 s{sT0}, s{sT0}, 8192
    v_add_u32 v{vRD[0]}, s{sT0}, v{vL16}
    s_lshl_b32 s{sT0}, s{sC2}, 12
    s_add_u32 s{sT0}, s{sT0}, 8192
    v_add_u32 v{vRD[1]}, s{sT0}, v{vL16}
    v_and_b32 v{vT2}, 7, v{vT0}
    v_mul_u32_u24 v{vOO}, 57344, v{vT2}
    v_lshrrev_b32 v{vT2}, 3, v{vT0}
    v_mul_u32_u24 v{vT2}, 896, v{vT2}
    v_add_u32 v{vOO}, v{vOO}, v{vT2}
    v_lshl_add_u32 v{vOO}, v{vT1}, 4, v{vOO}
    v_lshlrev_b32 v{vT1}, 3, v{vT0}
    s_lshl_b32 s{sT0}, s{sRB}, 9
    s_lshl_b32 s{sT1}, s{sTT}, 8
    s_add_u32 s{sT0}, s{sT0}, s{sT1}
    s_add_u32 s{sT0}, s{sT0}, {GT}
    s_waitcnt lgkmcnt(0)
    s_barrier
    """)
    srd(a, WS, "s24", "s25", WS_USED)
    srd(a, OUT, "s28", "s29", 2048*896)
    a(f"""
    buffer_load_dwordx2 {vr(vG,2)}, v{vT1}, s[{WS}:{WS+3}], s{sT0} offen
    s_lshr_b32 s{sT0}, s{sRB}, 3
    s_lshl_b32 s{sT0}, s{sT0}, 9
    s_and_b32 s{sT1}, s{sRB}, 7
    s_lshl_b32 s{sT1}, s{sT1}, 3
    s_add_u32 s{sT0}, s{sT0}, s{sT1}
    s_lshl_b32 s{sT1}, s{sTT}, 2
    s_add_u32 s{sT0}, s{sT0}, s{sT1}
    s_mul_i32 s{sT0}, s{sT0}, 896
    s_lshl_b32 s{sT1}, s{sCT}, 7
    s_add_u32 s{sT0}, s{sT0}, s{sT1}
    s_lshl_b32 s{sT1}, s{sC2}, 6
    s_add_u32 s{sT3}, s{sT0}, s{sT1}
    """)
    sSL, sI = 42, 43
    vFP = 19
    def reads(br):
        buf = FR + br*32
        a(f"v_add_u32 v{vA0}, s{sSL}, v{vRT[br]}")
        a(f"v_add_u32 v{vA1}, s{sSL}, v{vRD[br]}")
        a(f"ds_read_b32 v{vFT}, v{vFP} offset:{4*(br+1)}")
        for ks in range(4):
            for rho in range(2):
                a(f"ds_read_b64_tr_b16 {vr(buf + ks*8 + rho*2, 2)}, v{vA0} offset:{ks*2048 + rho*512}")
            a(f"ds_read_b128 {vr(buf + ks*8 + 4, 4)}, v{vA1} offset:{ks*1024}")
        a(f"""
        s_add_u32 s{sSL}, s{sSL}, {SLOT}
        s_cmp_eq_u32 s{sSL}, {NSLOT*SLOT}
        s_cselect_b32 s{sSL}, 0, s{sSL}
        """)
    def mf(br):
        buf = FR + br*32
        d = vr(ACC + br*16, 16)
        for ks in range(4):
            T = vr(buf + ks*8, 4); D = vr(buf + ks*8 + 4, 4)
            if br == 0: a(f"v_mfma_f32_32x32x16_bf16 {d}, {T}, {D}, {d}")
            else:       a(f"v_mfma_f32_32x32x16_bf16 {d}, {D}, {T}, {d}")
    for r in range(32): a(f"v_mov_b32 v{ACC+r}, 0")
    for r in range(32): a(f"v_mov_b32 v{FR+32+r}, 0")
    a(f"""
    s_mov_b32 s{sSL}, 0
    s_mov_b32 s{sI}, 0
    v_mov_b32 v{vFP}, v{vFA}
    """)
    spin_ge(a, vFA, vFT, sFL, 0, 4)
    a(".p2align 6")
    a.label("L_k3_loop")
    for br in range(2):
        buf = FR + br*32; pb = FR + (1-br)*32
        d = vr(ACC + (1-br)*16, 16)
        a(f"v_add_u32 v{vA0}, s{sSL}, v{vRT[br]}")
        a(f"v_add_u32 v{vA1}, s{sSL}, v{vRD[br]}")
        new_issued = 0
        for ks in range(4):
            a(f"s_waitcnt lgkmcnt({min(15, (9 - 3*ks) + 1 + new_issued)})")
            T = vr(pb + ks*8, 4); D = vr(pb + ks*8 + 4, 4)
            if br == 1: a(f"v_mfma_f32_32x32x16_bf16 {d}, {T}, {D}, {d}")
            else:       a(f"v_mfma_f32_32x32x16_bf16 {d}, {D}, {T}, {d}")
            if ks == 0:
                a(f"ds_read_b32 v{vFT}, v{vFP} offset:{4*(br+1)}"); new_issued += 1
            for rho in range(2):
                a(f"ds_read_b64_tr_b16 {vr(buf + ks*8 + rho*2, 2)}, v{vA0} offset:{ks*2048 + rho*512}")
            a(f"ds_read_b128 {vr(buf + ks*8 + 4, 4)}, v{vA1} offset:{ks*1024}")
            new_issued += 3
        a(f"""
        s_mov_b64 exec, 1
        ds_add_u32 v{vFP}, v{vONE} offset:{64 + 4*br}
        s_mov_b64 exec, -1
        s_add_u32 s{sSL}, s{sSL}, {SLOT}
        s_cmp_eq_u32 s{sSL}, {NSLOT*SLOT}
        s_cselect_b32 s{sSL}, 0, s{sSL}
        s_waitcnt lgkmcnt(13)
        v_readfirstlane_b32 s{sFL}, v{vFT}
        s_cmp_ge_u32 s{sFL}, 4
        s_cbranch_scc0 L_k3_spin{br}
        L_k3_ok{br}:
        """)
    a(f"""
    v_add_u32 v{vFP}, 8, v{vFP}
    s_add_u32 s{sI}, s{sI}, 1
    s_cmp_lt_u32 s{sI}, 7
    s_cbranch_scc1 L_k3_loop
    s_branch L_k3_done
    """)
    for br in range(2):
        a(f"""
        L_k3_spin{br}:
        ds_read_b32 v{vFT}, v{vFP} offset:{4*(br+1)}
        s_waitcnt lgkmcnt(0)
        v_readfirstlane_b32 s{sFL}, v{vFT}
        s_cmp_ge_u32 s{sFL}, 4
        s_cbranch_scc1 L_k3_ok{br}
        s_sleep 1
        s_branch L_k3_spin{br}
        """)
    a.label("L_k3_done")
    a("s_waitcnt lgkmcnt(0)")
    mf(1)
    a("s_waitcnt vmcnt(0)")
    a("s_nop 3")
    R = FR
    for r in range(16):
        a(f"v_mul_f32 v{R+r}, v{ACC+r}, v{vG+1}")
    for r in range(16):
        a(f"v_fmac_f32 v{R+r}, v{ACC+16+r}, v{vG}")
    PKD = FR + 16
    for qd in range(4):
        a(f"v_cvt_pk_bf16_f32 v{PKD+2*qd}, v{R+4*qd}, v{R+4*qd+1}")
        a(f"v_cvt_pk_bf16_f32 v{PKD+2*qd+1}, v{R+4*qd+2}, v{R+4*qd+3}")
    a("s_nop 1")
    for h in range(2):
        a(f"v_permlane32_swap_b32 v{PKD+4*h}, v{PKD+4*h+2}")
        a(f"v_permlane32_swap_b32 v{PKD+4*h+1}, v{PKD+4*h+3}")
    for h in range(2):
        a(f"buffer_store_dwordx4 {vr(PKD+4*h,4)}, v{vOO}, s[{OUT}:{OUT+3}], s{sT3} offen offset:{h*32}")
    a("s_endpgm")
    a.label("L_k3_end")
    a("s_endpgm")
    return a.text(), kdesc(name, NV, 64), f"; @launch kernel={name} grid=(224,1,1) block=(512,1,1) lds={K3_LDS}"
```

```python
import re
def instrument2(code, kidx):
    lines = code.split("\n")
    out = []
    started = False
    for i, l in enumerate(lines):
        s = l.strip()
        if not started and s.startswith("s_cbranch_scc1 L_k") and s.endswith("_end"):
            out.append(l)
            out.append("    s_memtime s[64:65]")
            out.append("    s_memrealtime s[66:67]")
            out.append("    s_load_dwordx2 s[72:73], s[0:1], 64")
            started = True
            continue
        if s == "s_endpgm" and not lines[i-1].strip().endswith("_end:"):
            out.append(f"""    s_waitcnt vmcnt(0) lgkmcnt(0)
    s_memtime s[68:69]
    s_memrealtime s[70:71]
    s_sub_u32 s76, s72, {512*kidx}
    s_subb_u32 s77, s73, 0
    s_and_b32 s77, s77, 0xffff
    s_mov_b32 s78, 256
    s_mov_b32 s79, 0x20000
    s_waitcnt lgkmcnt(0)
    s_mov_b64 exec, 1
    s_not_b32 s80, s66
    s_sub_u32 s81, s68, s64
    s_sub_u32 s82, s70, s66
    v_mov_b32 v2, s80
    v_mov_b32 v3, s70
    v_mov_b32 v4, s81
    v_mov_b32 v5, s82
    v_mov_b32 v6, 0
    buffer_atomic_umax v2, v6, s[76:79], 0 offen offset:{16*kidx}
    buffer_atomic_umax v3, v6, s[76:79], 0 offen offset:{16*kidx+4}
    buffer_atomic_umax v4, v6, s[76:79], 0 offen offset:{16*kidx+8}
    buffer_atomic_umax v5, v6, s[76:79], 0 offen offset:{16*kidx+12}""")
        out.append(l)
    return "\n".join(out)
```

```python
import re
def instrument2(code, kidx):
    lines = code.split("\n")
    out = []
    started = False
    for i, l in enumerate(lines):
        s = l.strip()
        if not started and s.startswith("s_cbranch_scc1 L_k") and s.endswith("_end"):
            out.append(l)
            out.append("    s_memtime s[64:65]")
            out.append("    s_memrealtime s[66:67]")
            out.append("    s_load_dwordx2 s[72:73], s[0:1], 64")
            out.append("    s_mov_b32 s84, 0")
            started = True
            continue
        if s == "s_endpgm" and not lines[i-1].strip().endswith("_end:"):
            out.append(f"""    s_waitcnt vmcnt(0) lgkmcnt(0)
    s_memtime s[68:69]
    s_memrealtime s[70:71]
    s_add_u32 s76, s72, {512*(2-kidx)}
    s_addc_u32 s77, s73, 0
    s_and_b32 s77, s77, 0xffff
    s_mov_b32 s78, 256
    s_mov_b32 s79, 0x20000
    s_waitcnt lgkmcnt(0)
    s_mov_b64 exec, 1
    s_mov_b32 s80, s66
    s_sub_u32 s81, s68, s64
    s_sub_u32 s82, s70, s66
    v_mov_b32 v2, s80
    v_mov_b32 v3, s70
    v_mov_b32 v4, s81
    v_mov_b32 v5, s82
    v_mov_b32 v6, 0
    v_readfirstlane_b32 s83, v0
    s_lshr_b32 s83, s83, 6
    s_or_b32 s83, s83, s84
    s_cmp_eq_u32 s2, 5
    s_cselect_b32 s83, s83, 1
    s_cmp_eq_u32 s83, 0
    s_cselect_b32 s83, 0, 0x1000
    buffer_store_dwordx4 v[2:5], v6, s[76:79], s83 offen offset:{16*kidx}""")
        out.append(l)
    return "\n".join(out)
```

```python
from asmlib import *
from layout import *
from tables import FFT_SIZE
import math, os, struct
EXP = os.environ.get('K1EXP', 'rotmix')

SLOT = 31744
NSLOT = 5
LDS_F = SLOT * NSLOT
K1_LDS = LDS_F + 64
QSCALE = (28 ** -0.5) * math.log2(math.e)
def f2u(f): return struct.unpack("<I", struct.pack("<f", f))[0]

def spin_ge(a, vaddr, vtmp, stmp, off, val, first_sleep=False):
    lsp = a.newlabel("sp"); lok = a.newlabel("ok")
    a.label(lsp)
    a(f"""
    ds_read_b32 v{vtmp}, v{vaddr} offset:{off}
    s_waitcnt lgkmcnt(0)
    v_readfirstlane_b32 s{stmp}, v{vtmp}
    s_cmp_ge_u32 s{stmp}, {val}
    s_cbranch_scc1 {lok}
    s_sleep 1
    s_branch {lsp}
    """)
    a.label(lok)
    a.lg = []

def gen_k1():
    a = Asm()
    name = "k1_kernel"
    a.lines.append(khead(name))
    X, BS, WS, WR, WI = 4, 8, 12, 16, 20
    sMT, sTY, sHG, sW, sMQ = 34, 35, 36, 37, 38
    sT0, sT1, sT2, sT3 = 40, 41, 42, 43
    sBROW, sASO, sBSO, sFL = 44, 45, 46, 47
    sMASK56 = 48
    sBCH, sB4, sOB, sSC, sCC, sTOK, sCOL = 50, 51, 52, 53, 54, 55, 56
    sAOFF = 64 - 4
    vLANE = 1
    vT0, vT1, vT2, vT3 = 2, 3, 4, 5
    vFA, vFT, vONE = 6, 7, 8
    a(f"""
    s_cmp_ge_u32 s2, 256
    s_cbranch_scc1 L_k1_end
    s_load_dwordx4 s[24:27], s[0:1], 0
    s_load_dwordx2 s[28:29], s[0:1], 16
    s_load_dwordx2 s[30:31], s[0:1], 32
    s_load_dwordx2 s[32:33], s[0:1], 72
    s_getpc_b64 s[58:59]
    s_add_u32 s58, s58, tbl_fd@rel32@lo+4
    s_addc_u32 s59, s59, tbl_fd@rel32@hi+12
    v_and_b32 v{vLANE}, 63, v0
    v_lshrrev_b32 v{vT0}, 6, v0
    s_and_b32 s{sT0}, s2, 7
    s_lshr_b32 s{sT1}, s2, 3
    v_readfirstlane_b32 s{sW}, v{vT0}
    s_lshr_b32 s{sHG}, s{sT0}, 1
    s_and_b32 s{sT2}, s{sT0}, 1
    s_lshl_b32 s{sT2}, s{sT2}, 3
    s_and_b32 s{sMT}, s{sT1}, 7
    s_add_u32 s{sMT}, s{sMT}, s{sT2}
    s_lshr_b32 s{sTY}, s{sT1}, 3
    s_and_b32 s{sMQ}, s{sW}, 3
    v_mov_b32 v{vFA}, {LDS_F}
    v_mov_b32 v{vONE}, 1
    s_cmp_ge_u32 s{sW}, 8
    s_cbranch_scc0 L_k1_compute
    """)
    vAO, vBO, vWKO, vWSO = 9, 10, 11, 12
    vWT = 16
    vZ = 40
    a(f"""
    s_lshr_b32 s{sTOK}, s{sMT}, 2
    s_lshl_b32 s{sTOK}, s{sTOK}, 9
    s_and_b32 s{sT2}, s{sMT}, 3
    s_lshl_b32 s{sT2}, s{sT2}, 4
    s_add_u32 s{sTOK}, s{sTOK}, s{sT2}
    s_mul_i32 s{sTOK}, s{sTOK}, 896
    v_lshrrev_b32 v{vT0}, 3, v{vLANE}
    v_and_b32 v{vT1}, 7, v{vLANE}
    v_xor_b32 v{vT1}, v{vT1}, v{vT0}
    v_lshlrev_b32 v{vT1}, 4, v{vT1}
    v_mul_u32_u24 v{vT2}, 57344, v{vT0}
    v_and_b32 v{vT3}, 3, v{vT0}
    v_mul_u32_u24 v{vT3}, 57344, v{vT3}
    v_lshrrev_b32 v{vT0}, 2, v{vT0}
    v_mul_u32_u24 v{vT0}, 896, v{vT0}
    v_add_u32 v{vT3}, v{vT3}, v{vT0}
    s_cmp_eq_u32 s{sTY}, 3
    s_cselect_b64 vcc, -1, 0
    s_nop 1
    v_cndmask_b32 v{vT2}, v{vT2}, v{vT3}, vcc
    v_add3_u32 v{vAO}, v{vT2}, v{vT1}, s{sTOK}
    v_mul_u32_u24 v{vT0}, 4682, v{vLANE}
    v_lshrrev_b32 v{vT0}, 16, v{vT0}
    v_mul_u32_u24 v{vT1}, 14, v{vT0}
    v_sub_u32 v{vT1}, v{vLANE}, v{vT1}
    v_lshlrev_b32 v{vT1}, 4, v{vT1}
    v_cmp_gt_u32 vcc, 56, v{vLANE}
    s_mov_b64 s[{sMASK56}:{sMASK56+1}], vcc
    s_mov_b32 s{sBROW}, 2688
    s_cmp_eq_u32 s{sTY}, 3
    s_cselect_b32 s{sBROW}, 896, s{sBROW}
    s_cselect_b32 s{sCOL}, 0, s{sTY}
    s_lshl_b32 s{sCOL}, s{sCOL}, 2
    s_add_u32 s{sCOL}, s{sCOL}, s{sHG}
    s_mul_i32 s{sCOL}, s{sCOL}, 224
    v_mul_lo_u32 v{vT0}, v{vT0}, s{sBROW}
    v_add3_u32 v{vBO}, v{vT0}, v{vT1}, s{sCOL}
    s_lshl_b32 s{sBCH}, s{sBROW}, 6
    s_lshl_b32 s{sB4}, s{sBROW}, 2
    s_lshl_b32 s{sCC}, s{sTY}, 1
    s_add_u32 s{sCC}, s{sCC}, s{sMT}
    {"s_mov_b32 s" + str(sCC) + ", 0" if "norot" in EXP else ""}
    {"s_and_b32 s" + str(sCC) + ", s2, 7" if "rotxcd" in EXP else ""}
    {"s_and_b32 s" + str(sCC) + ", s2, 7" if "rotmix" in EXP else ""}
    {"s_bfe_u32 s" + str(sT2) + ", s2, 0x10003" if "rotmix" in EXP else ""}
    {"s_mul_i32 s" + str(sT2) + ", s" + str(sT2) + ", 3" if "rotmix" in EXP else ""}
    {"s_add_u32 s" + str(sCC) + ", s" + str(sCC) + ", s" + str(sT2) if "rotmix" in EXP else ""}
    s_add_u32 s{sCC}, s{sCC}, s{sMQ}
    """)
    a("s_waitcnt lgkmcnt(0)")
    srd(a, X, "s24", "s25", 2048*896)
    a(f"""
    s_mov_b32 s{BS+2}, {448*2688}
    s_cmp_eq_u32 s{sTY}, 3
    s_cselect_b32 s{BS}, s58, s30
    s_cselect_b32 s{BS+1}, s59, s31
    s_cselect_b32 s{BS+2}, {448*896}, s{BS+2}
    s_mov_b32 s{BS+3}, 0x20000
    s_and_b32 s{BS+1}, s{BS+1}, 0xffff
    """)
    DEPTH = int(os.environ.get('K1DEPTH', '2'))
    sAO = [60, 61, 62, 63]
    sM0A, sM0B, sBW = 57, 39, 22
    a(f"s_mul_i32 s{sT2}, s{sMQ}, {4*896}")
    for ii in range(4):
        a(f"""
        s_mov_b32 s{sT3}, {ii*896}
        s_cmp_eq_u32 s{sTY}, 3
        s_cselect_b32 s{sT3}, {(256*(ii >> 1) + 2*(ii & 1))*896}, s{sT3}
        s_add_u32 s{sAO[ii]}, s{sT3}, s{sT2}
        """)
    a(f"""
    s_lshl_b32 s{sM0A}, s{sMQ}, 12
    s_mul_i32 s{sM0B}, s{sMQ}, 3840
    s_add_u32 s{sM0B}, s{sM0B}, 16384
    s_lshl_b32 s{sT2}, s{sB4}, 2
    s_mul_i32 s{sBW}, s{sT2}, s{sMQ}
    s_sub_u32 s{sCC}, s{sCC}, s{sMQ}
    s_mul_i32 s{sT3}, s{sCC}, 37
    s_lshr_b32 s{sT3}, s{sT3}, 8
    s_mul_i32 s{sT3}, s{sT3}, 7
    s_sub_u32 s{sT3}, s{sCC}, s{sT3}
    s_lshl_b32 s{sASO}, s{sT3}, 7
    s_mul_i32 s{sBSO}, s{sT3}, s{sBCH}
    """)
    def issue(c):
        slot = (c % NSLOT) * SLOT
        for ii in range(4):
            a(f"s_add_u32 m0, s{sM0A}, {slot + ii*1024}")
            a(f"s_add_u32 s{sT2}, s{sAO[ii]}, s{sASO}")
            a.vmem(f"buffer_load_dwordx4 v{vAO}, s[{X}:{X+3}], s{sT2} offen lds", f"c{c}")
        a(f"s_mov_b64 exec, s[{sMASK56}:{sMASK56+1}]")
        a(f"s_add_u32 s{sT2}, s{sBSO}, s{sBW}")
        for ii in range(4):
            a(f"s_add_u32 m0, s{sM0B}, {slot + (ii >> 1)*1920 + (ii & 1)*896}")
            if ii > 0: a(f"s_add_u32 s{sT2}, s{sT2}, s{sB4}")
            else: a("s_nop 0")
            a.vmem(f"buffer_load_dwordx4 v{vBO}, s[{BS}:{BS+3}], s{sT2} offen lds", f"c{c}")
        a(f"""
        s_mov_b64 exec, -1
        s_add_u32 s{sASO}, s{sASO}, 128
        s_add_u32 s{sBSO}, s{sBSO}, s{sBCH}
        s_cmp_eq_u32 s{sASO}, 896
        s_cselect_b32 s{sASO}, 0, s{sASO}
        s_cselect_b32 s{sBSO}, 0, s{sBSO}
        """)
    XA, XB, GWr, U = 44, 48, 52, 56
    sGT = 39
    def wt_issue():
        srd(a, WR, "s26", "s27", 2048*450)
        srd(a, WI, "s28", "s29", 2048*450)
        srd(a, WS, "s32", "s33", WS_USED)
        a(f"""
        s_and_b32 s{sT0}, s2, 7
        s_lshr_b32 s{sT1}, s2, 3
        s_lshl_b32 s{sT2}, s{sT0}, 5
        s_add_u32 s{sT2}, s{sT2}, s{sT1}
        s_lshl_b32 s{sT2}, s{sT2}, 3
        s_mul_i32 s{sT3}, s{sT2}, 450
        v_and_b32 v{vT0}, 255, v0
        v_lshlrev_b32 v{vWKO}, 1, v{vT0}
        v_mul_u32_u24 v{vWSO}, {WFS}, v{vT0}
        s_lshl_b32 s{sT2}, s{sT2}, 2
        s_add_u32 s{sT2}, s{sT2}, {WF}
        v_add_u32 v{vWSO}, s{sT2}, v{vWSO}
        v_mov_b32 v{vT1}, 0x7fffffff
        v_cmp_gt_u32 vcc, 225, v{vT0}
        s_nop 1
        v_cndmask_b32 v{vWSO}, v{vT1}, v{vWSO}, vcc
        """)
        for i in range(8):
            a.vmem(f"buffer_load_ushort v{vWT+i}, v{vWKO}, s[{WR}:{WR+3}], s{sT3} offen offset:{450*i}", "wt")
            a.vmem(f"buffer_load_ushort v{vWT+8+i}, v{vWKO}, s[{WI}:{WI+3}], s{sT3} offen offset:{450*i}", "wt")

    def gate_issue():
        a(f"""
        s_load_dwordx2 s[62:63], s[0:1], 48
        s_lshl_b32 s{sT0}, s2, 3
        s_lshl_b32 s{sT1}, s{sMQ}, 1
        s_add_u32 s{sGT}, s{sT0}, s{sT1}
        s_and_b32 s{sT1}, s{sGT}, 7
        s_lshl_b32 s{sT1}, s{sT1}, 6
        s_bfe_u32 s{sT2}, s{sGT}, 0x60003
        s_add_u32 s{sT1}, s{sT1}, s{sT2}
        s_lshr_b32 s{sT2}, s{sGT}, 9
        s_lshl_b32 s{sT2}, s{sT2}, 9
        s_add_u32 s{sT1}, s{sT1}, s{sT2}
        s_mul_i32 s{sT1}, s{sT1}, 896
        s_add_u32 s{sT2}, s{sT1}, {64*896}
        v_lshlrev_b32 v{vT2}, 4, v{vLANE}
        v_mov_b32 v{vT1}, 0x7fffffff
        v_cndmask_b32 v{vT1}, v{vT1}, v{vT2}, s[{sMASK56}:{sMASK56+1}]
        s_waitcnt lgkmcnt(0)
        """)
        srd(a, BS, "s62", "s63", 896)
        a.vmem(f"buffer_load_dwordx4 {vr(XA,4)}, v{vT1}, s[{X}:{X+3}], s{sT1} offen", "gt")
        a.vmem(f"buffer_load_dwordx4 {vr(XB,4)}, v{vT1}, s[{X}:{X+3}], s{sT2} offen", "gt")
        a.vmem(f"buffer_load_dwordx4 {vr(GWr,4)}, v{vT1}, s[{BS}:{BS+3}], 0 offen", "gt")
    def gate_finish():
        vA, vB = 13, 14
        for r in range(4):
            a(f"v_lshlrev_b32 v{U+2*r}, 16, v{GWr+r}")
            a(f"v_and_b32 v{U+2*r+1}, 0xffff0000, v{GWr+r}")
        for Xr, acc in ((XA, vT2), (XB, vT3)):
            for r in range(4):
                a(f"""
                v_lshlrev_b32 v{vA}, 16, v{Xr+r}
                v_and_b32 v{vB}, 0xffff0000, v{Xr+r}
                v_mul_f32 v{vA}, v{vA}, v{U+2*r}
                v_mul_f32 v{vB}, v{vB}, v{U+2*r+1}
                v_cvt_pk_bf16_f32 v{vA}, v{vA}, v{vB}
                v_lshlrev_b32 v{vB}, 16, v{vA}
                v_and_b32 v{vA}, 0xffff0000, v{vA}
                """)
                if r == 0: a(f"v_add_f32 v{acc}, v{vA}, v{vB}")
                else:
                    a(f"v_add_f32 v{acc}, v{acc}, v{vA}")
                    a(f"v_add_f32 v{acc}, v{acc}, v{vB}")
        for dpp in ("row_shr:1 bound_ctrl:0", "row_shr:2 bound_ctrl:0", "row_shr:4 bound_ctrl:0", "row_shr:8 bound_ctrl:0", "row_bcast:15 row_mask:0xa", "row_bcast:31 row_mask:0xc"):
            a("s_nop 1")
            a(f"v_add_f32_dpp v{vT2}, v{vT2}, v{vT2} {dpp}")
            a(f"v_add_f32_dpp v{vT3}, v{vT3}, v{vT3} {dpp}")
        a(f"""
        v_cvt_pk_bf16_f32 v{vA}, v{vT2}, v{vT3}
        v_lshlrev_b32 v{vT2}, 16, v{vA}
        v_and_b32 v{vT3}, 0xffff0000, v{vA}
        v_mul_f32 v{vT2}, {f2u(-1.4426950408889634)}, v{vT2}
        v_mul_f32 v{vT3}, {f2u(-1.4426950408889634)}, v{vT3}
        v_exp_f32 v{vT2}, v{vT2}
        v_exp_f32 v{vT3}, v{vT3}
        s_nop 0
        v_add_f32 v{vT2}, 1.0, v{vT2}
        v_add_f32 v{vT3}, 1.0, v{vT3}
        v_rcp_f32 v{vT2}, v{vT2}
        v_rcp_f32 v{vT3}, v{vT3}
        s_nop 0
        v_cvt_pk_bf16_f32 v{vA}, v{vT2}, v{vT3}
        v_lshlrev_b32 v{U}, 16, v{vA}
        v_and_b32 v{U+2}, 0xffff0000, v{vA}
        v_sub_f32 v{vT2}, 1.0, v{U}
        v_sub_f32 v{vT3}, 1.0, v{U+2}
        v_cvt_pk_bf16_f32 v{vA}, v{vT2}, v{vT3}
        v_lshlrev_b32 v{U+1}, 16, v{vA}
        v_and_b32 v{U+3}, 0xffff0000, v{vA}
        v_mov_b32 v{vT1}, 0x7fffffff
        v_cmp_eq_u32 vcc, 63, v{vLANE}
        s_lshl_b32 s{sGT}, s{sGT}, 3
        s_add_u32 s{sGT}, s{sGT}, {GT}
        v_cndmask_b32 v{vT1}, v{vT1}, 0, vcc
        buffer_store_dwordx4 {vr(U,4)}, v{vT1}, s[{WS}:{WS+3}], s{sGT} offen
        """)
    def prefetch_k2():
        a(f"""
        s_getpc_b64 s[60:61]
        s_add_u32 s60, s60, tbl_fft@rel32@lo+4
        s_addc_u32 s61, s61, tbl_fft@rel32@hi+12
        s_getpc_b64 s[62:63]
        s_add_u32 s62, s62, k2_kernel@rel32@lo+4
        s_addc_u32 s63, s63, k2_kernel@rel32@hi+12
        s_lshr_b32 s{sT0}, s2, 3
        s_lshl_b32 s{sT0}, s{sT0}, 2
        s_add_u32 s{sT0}, s{sT0}, s{sMQ}
        s_mul_i32 s{sT1}, s{sT0}, 576
        v_lshlrev_b32 v{vT1}, 7, v{vLANE}
        v_min_u32 v{vT2}, 640, v{vT1}
        """)
        srd(a, BS, "s60", "s61", FFT_SIZE)
        a.vmem(f"buffer_load_dword v15, v{vT2}, s[{BS}:{BS+3}], s{sT1} offen", "pf")
        srd(a, BS, "s62", "s63", "L_k2_end-k2_kernel")
        a(f"s_lshl_b32 s{sT1}, s{sMQ}, 13")
        a.vmem(f"buffer_load_dword v15, v{vT1}, s[{BS}:{BS+3}], s{sT1} offen", "pf")
    issue(0)
    a("s_barrier")
    for c in range(1, DEPTH): issue(c)
    for c in range(7):
        a.wait_vm(f"c{c}")
        a(f"""
        s_mov_b64 exec, 1
        ds_add_u32 v{vFA}, v{vONE} offset:{4 + 4*c}
        s_mov_b64 exec, -1
        """)
        if c == 0: a.comment("STAMP2")
        if c == 3: a.comment("STAMP3")
        if c == 6: a.comment("STAMP4")
        n = c + DEPTH
        if n < 7:
            if n >= NSLOT: spin_ge(a, vFA, vFT, sFL, 36 + 4*(n - NSLOT), 8)
            issue(n)
            if n == 6:
                wt_issue(); gate_issue()
                if 'nopf' not in EXP: prefetch_k2()
    a(f"""
    s_cmp_eq_u32 s{sTY}, 3
    s_cbranch_scc1 L_k1_paddone
    s_cmp_eq_u32 s{sTY}, 2
    s_cbranch_scc1 L_k1_padv
    """)
    a(f"""
    v_lshrrev_b32 v{vT2}, 7, v{vT0}
    s_lshl_b32 s{sT3}, s{sHG}, 2
    v_add_u32 v{vT2}, s{sT3}, v{vT2}
    v_lshlrev_b32 v{vT2}, 6, v{vT2}
    v_bfe_u32 v{vT3}, v{vT0}, 5, 2
    s_lshl_b32 s{sT3}, s{sMT}, 2
    v_add3_u32 v{vT2}, v{vT2}, v{vT3}, s{sT3}
    s_add_u32 s{sT3}, s{sTY}, 11
    v_lshlrev_b32 v{vT2}, s{sT3}, v{vT2}
    v_and_b32 v{vT3}, 31, v{vT0}
    v_lshl_add_u32 v{vT2}, v{vT3}, 4, v{vT2}
    s_mul_i32 s{sT3}, s{sTY}, {KV}
    s_add_u32 s{sT3}, s{sT3}, {1024+512+8}
    s_lshl_b32 s{sT2}, 0x40000, s{sTY}
    s_add_u32 s{sT2}, s{sT2}, s{sT3}
    v_mov_b32 v{vZ}, 0
    v_mov_b32 v{vZ+1}, 0
    buffer_store_dwordx2 v[{vZ}:{vZ+1}], v{vT2}, s[{WS}:{WS+3}], s{sT3} offen
    buffer_store_dwordx2 v[{vZ}:{vZ+1}], v{vT2}, s[{WS}:{WS+3}], s{sT2} offen
    s_branch L_k1_paddone
    L_k1_padv:
    {"s_cmp_eq_u32 s" + str(sMQ) + ", 0" if "novz" in EXP else ""}
    {"s_cbranch_scc0 L_k1_paddone" if "novz" in EXP else ""}
    v_lshrrev_b32 v{vT2}, 4, v{vLANE}
    s_lshl_b32 s{sT3}, s{sHG}, 2
    v_add_u32 v{vT2}, s{sT3}, v{vT2}
    v_lshlrev_b32 v{vT2}, 6, v{vT2}
    v_bfe_u32 v{vT3}, v{vLANE}, 2, 2
    s_lshl_b32 s{sT3}, s{sMT}, 2
    v_add3_u32 v{vT2}, v{vT2}, v{vT3}, s{sT3}
    v_lshlrev_b32 v{vT2}, 12, v{vT2}
    v_and_b32 v{vT3}, 3, v{vLANE}
    v_lshl_add_u32 v{vT2}, v{vT3}, 9, v{vT2}
    s_cmp_eq_u32 s{sMQ}, 0
    s_cselect_b32 s{sT3}, 0x3f803f80, 0
    v_mov_b32 v{vZ}, s{sT3}
    v_mov_b32 v{vZ+1}, s{sT3}
    v_mov_b32 v{vZ+2}, s{sT3}
    v_mov_b32 v{vZ+3}, s{sT3}
    s_lshl_b32 s{sT3}, s{sMQ}, 4
    s_add_u32 s{sT3}, s{sT3}, {KV + 2048 + 28*16}
    buffer_store_dwordx4 v[{vZ}:{vZ+3}], v{vT2}, s[{WS}:{WS+3}], s{sT3} offen
    L_k1_paddone:
    s_waitcnt vmcnt(0)
    """)
    for i in range(8):
        a(f"v_lshl_or_b32 v{vWT+i}, v{vWT+8+i}, 16, v{vWT+i}")
    a(f"""
    buffer_store_dwordx4 v[{vWT}:{vWT+3}], v{vWSO}, s[{WS}:{WS+3}], 0 offen
    buffer_store_dwordx4 v[{vWT+4}:{vWT+7}], v{vWSO}, s[{WS}:{WS+3}], 0 offen offset:16
    """)
    gate_finish()
    if "wbl2" in EXP:
        a(f"""
        s_cmp_eq_u32 s{sMQ}, 0
        s_cbranch_scc0 L_k1_nowb
        s_waitcnt vmcnt(0)
        s_sleep {os.environ.get("WBSLEEP", "8")}
        buffer_wbl2 sc1
        L_k1_nowb:
        """)
    a("s_endpgm")

    a.label("L_k1_compute")
    vLA = [[9, 10], [11, 12], [13, 14]]
    vLB = [15, 16, 17]
    vPK = 18
    vEO = 20
    ACC, AF, BF = 32, 64, 80
    NV = 112
    a(f"""
    v_and_b32 v{vT0}, 15, v{vLANE}
    v_lshl_add_u32 v{vT1}, v{vT0}, 2, v{vFA}
    v_cmp_eq_u32 vcc, 8, v{vT0}
    v_mov_b32 v{vT2}, 0
    v_mov_b32 v{vT3}, 4
    v_cndmask_b32 v{vT2}, v{vT2}, v{vT3}, vcc
    ds_write_b32 v{vT1}, v{vT2}
    v_lshrrev_b32 v{vT1}, 4, v{vLANE}
    v_and_b32 v{vT2}, 7, v{vT0}
    v_xor_b32 v{vT2}, v{vT2}, v{vT1}
    v_lshlrev_b32 v{vT2}, 4, v{vT2}
    v_lshl_add_u32 v{vT2}, v{vT0}, 7, v{vT2}
    s_lshl_b32 s{sT3}, s{sMQ}, 12
    v_add_u32 v{vLA[0][0]}, s{sT3}, v{vT2}
    v_xor_b32 v{vLA[0][1]}, 64, v{vLA[0][0]}
    v_add_u32 v{vLA[1][0]}, {2*SLOT}, v{vLA[0][0]}
    v_add_u32 v{vLA[1][1]}, {2*SLOT}, v{vLA[0][1]}
    v_add_u32 v{vLA[2][0]}, {4*SLOT}, v{vLA[0][0]}
    v_add_u32 v{vLA[2][1]}, {4*SLOT}, v{vLA[0][1]}
    v_mul_u32_u24 v{vT2}, 1920, v{vT1}
    v_lshrrev_b32 v{vT3}, 2, v{vT0}
    v_mul_u32_u24 v{vT3}, 224, v{vT3}
    v_add_u32 v{vT2}, v{vT2}, v{vT3}
    v_and_b32 v{vT3}, 3, v{vLANE}
    v_lshl_add_u32 v{vLB[0]}, v{vT3}, 3, v{vT2}
    v_add_u32 v{vLB[1]}, {2*SLOT}, v{vLB[0]}
    v_add_u32 v{vLB[2]}, {4*SLOT}, v{vLB[0]}
    s_waitcnt lgkmcnt(0)
    """)
    if "touch" in EXP:
        a(f"""
        s_cmp_ge_u32 s{sW}, 7
        s_cbranch_scc1 L_k1_tdone
        v_min_u32 v{vT2}, 55, v{vLANE}
        s_cmp_ge_u32 s{sW}, 4
        s_cbranch_scc1 L_k1_tw
        """)
        srd(a, X, "s24", "s25", 2048*896)
        a(f"""
        s_and_b32 s{sT0}, s2, 1
        s_mul_i32 s{sT0}, s{sT0}, 917504
        s_lshr_b32 s{sT1}, s2, 3
        s_lshl_b32 s{sT1}, s{sT1}, 2
        s_add_u32 s{sT1}, s{sT1}, s{sW}
        s_mul_i32 s{sT1}, s{sT1}, {56*128}
        s_add_u32 s{sT0}, s{sT0}, s{sT1}
        v_lshlrev_b32 v{vT2}, 7, v{vT2}
        buffer_load_dword v19, v{vT2}, s[{X}:{X+3}], s{sT0} offen
        s_branch L_k1_tdone
        L_k1_tw:
        s_mov_b32 s{BS+2}, {448*2688}
        s_mov_b32 s{sBROW}, 2688
        s_cmp_eq_u32 s{sTY}, 3
        s_cselect_b32 s{BS}, s58, s30
        s_cselect_b32 s{BS+1}, s59, s31
        s_cselect_b32 s{BS+2}, {448*896}, s{BS+2}
        s_mov_b32 s{BS+3}, 0x20000
        s_cselect_b32 s{sBROW}, 896, s{sBROW}
        s_cselect_b32 s{sCOL}, 0, s{sTY}
        s_and_b32 s{BS+1}, s{BS+1}, 0xffff
        s_lshl_b32 s{sCOL}, s{sCOL}, 2
        s_add_u32 s{sCOL}, s{sCOL}, s{sHG}
        s_mul_i32 s{sCOL}, s{sCOL}, 224
        s_and_b32 s{sT0}, s{sMT}, 7
        s_mul_i32 s{sT0}, s{sT0}, 56
        s_mul_i32 s{sT0}, s{sT0}, s{sBROW}
        s_add_u32 s{sT0}, s{sT0}, s{sCOL}
        s_sub_u32 s{sT1}, s{sW}, 4
        s_mul_i32 s{sT1}, s{sT1}, 108
        s_add_u32 s{sT0}, s{sT0}, s{sT1}
        v_mul_lo_u32 v{vT2}, v{vT2}, s{sBROW}
        buffer_load_dword v19, v{vT2}, s[{BS}:{BS+3}], s{sT0} offen offset:4
        L_k1_tdone:
        """)
    a("s_barrier")
    srd(a, WS, "s32", "s33", WS_USED)
    for j in range(4): a(f"v_mov_b32 v{vEO+j}, 0")
    sNH = 48
    a(f"s_lshr_b32 s{sNH}, s{sW}, 2")
    a(f"s_lshl_b32 s{sT3}, s{sNH}, 7")
    a(f"v_add_u32 v15, s{sT3}, v15")
    a(f"s_mov_b32 s{sSC}, 1.0")
    def eo_T0(nh):
        NT = 4 - nh
        lq = a.newlabel("k1dfto"); lend = a.newlabel("k1eod")
        a(f"""
        s_cmp_eq_u32 s{sTY}, 3
        s_cbranch_scc1 {lq}
        s_add_u32 s{sT2}, s{sTY}, 17
        """)
        for j in range(NT):
            a(f"""
            v_lshlrev_b32 v{vT2}, 2, v{vT1}
            v_add_u32 v{vT2}, {16*(j+4*nh)}, v{vT2}
            v_mul_u32_u24 v{vT3}, 2341, v{vT2}
            v_lshrrev_b32 v{vT3}, 16, v{vT3}
            v_mul_u32_u24 v{vPK}, 28, v{vT3}
            v_sub_u32 v{vT2}, v{vT2}, v{vPK}
            v_lshlrev_b32 v{vT3}, s{sT2}, v{vT3}
            v_lshrrev_b32 v{vPK}, 3, v{vT2}
            v_lshl_add_u32 v{vT3}, v{vPK}, 9, v{vT3}
            v_and_b32 v{vT2}, 4, v{vT2}
            v_lshl_add_u32 v{vT3}, v{vT2}, 1, v{vT3}
            v_lshl_add_u32 v{vEO+j}, v{vT0}, 4, v{vT3}
            """)
        a(f"""
        s_lshl_b32 s{sOB}, s{sHG}, 8
        s_lshl_b32 s{sT3}, s{sMT}, 2
        s_add_u32 s{sOB}, s{sOB}, s{sT3}
        s_add_u32 s{sOB}, s{sOB}, s{sMQ}
        s_add_u32 s{sT3}, s{sTY}, 11
        s_lshl_b32 s{sOB}, s{sOB}, s{sT3}
        s_mul_i32 s{sT3}, s{sTY}, {KV}
        s_add_u32 s{sOB}, s{sOB}, s{sT3}
        s_cmp_eq_u32 s{sTY}, 0
        s_cselect_b32 s{sSC}, {f2u(QSCALE)}, 1.0
        s_branch {lend}
        """)
        a.label(lq)
        a(f"""
        v_mul_u32_u24 v{vT2}, {2*X1S}, v{vT1}
        v_lshl_add_u32 v{vEO}, v{vT0}, 2, v{vT2}
        v_add_u32 v{vEO+1}, {X1S}, v{vEO}
        s_mul_i32 s{sOB}, s{sHG}, {56*X1S}
        s_bfe_u32 s{sT3}, s{sMT}, 0x10001
        s_lshl_b32 s{sT3}, s{sT3}, 12
        s_add_u32 s{sOB}, s{sOB}, s{sT3}
        s_lshr_b32 s{sT3}, s{sMT}, 2
        s_lshl_b32 s{sT3}, s{sT3}, 10
        s_add_u32 s{sOB}, s{sOB}, s{sT3}
        s_and_b32 s{sT3}, s{sMT}, 1
        s_lshl_b32 s{sT3}, s{sT3}, 8
        s_add_u32 s{sOB}, s{sOB}, s{sT3}
        s_lshl_b32 s{sT3}, s{sMQ}, 6
        s_add_u32 s{sOB}, s{sOB}, s{sT3}
        s_add_u32 s{sOB}, s{sOB}, {X1F + nh*4*8*X1S}
        """)
        a.label(lend)
    def eo_T1(nh):
        NT = 4 - nh
        a(f"""
        v_bfe_u32 v{vT1}, v{vLANE}, 4, 1
        v_lshlrev_b32 v{vT1}, 9, v{vT1}
        v_lshrrev_b32 v{vT2}, 5, v{vLANE}
        v_lshl_add_u32 v{vT1}, v{vT2}, 3, v{vT1}
        """)
        for j in range(NT):
            a(f"""
            v_add_u32 v{vT2}, {16*(j+4*nh)}, v{vT0}
            v_mul_u32_u24 v{vT3}, 2341, v{vT2}
            v_lshrrev_b32 v{vT3}, 16, v{vT3}
            v_mul_u32_u24 v{vPK}, 28, v{vT3}
            v_sub_u32 v{vT2}, v{vT2}, v{vPK}
            v_lshl_add_u32 v{vT3}, v{vT3}, 18, v{vT1}
            v_lshl_add_u32 v{vEO+j}, v{vT2}, 4, v{vT3}
            """)
        a(f"""
        s_lshl_b32 s{sOB}, s{sHG}, 8
        s_lshl_b32 s{sT3}, s{sMT}, 2
        s_add_u32 s{sOB}, s{sOB}, s{sT3}
        s_add_u32 s{sOB}, s{sOB}, s{sMQ}
        s_lshl_b32 s{sOB}, s{sOB}, 12
        s_add_u32 s{sOB}, s{sOB}, {KV + 2048}
        """)
    def mainloop(T, nh):
        NT = 4 - nh
        NB = 2*NT
        vA0, vA1, vB, vA0n, vBn, vFP = 11, 12, 13, 14, 16, 17
        sSL, sI = 57, 39
        def reads(tt, va, vb):
            buf = tt
            L = []
            for i in range(2):
                L.append(f"ds_read_b128 {vr(AF + buf*8 + i*4, 4)}, v{va} offset:{i*2048}")
            for j in range(NT):
                for rho in range(2):
                    L.append(f"ds_read_b64_tr_b16 {vr(BF + buf*16 + j*4 + rho*2, 2)}, v{vb} offset:{16384 + tt*7680 + rho*896 + j*32}")
            return L
        def mfmas(buf):
            L = []
            for j in range(NT):
                for i in range(2):
                    d = vr(ACC + (i*4 + j)*4, 4)
                    xa = vr(AF + buf*8 + i*4, 4); wb = vr(BF + buf*16 + j*4, 4)
                    L.append(f"v_mfma_f32_16x16x32_bf16 {d}, {wb}, {xa}, {d}" if T == 0 else f"v_mfma_f32_16x16x32_bf16 {d}, {xa}, {wb}, {d}")
            return L
        def inter(M, R, tailops=0):
            ri = 0
            for j in range(NT):
                n = (NB - 2*(j + 1)) + tailops + ri
                a(f"s_waitcnt lgkmcnt({min(n, 15)})")
                a(M[2*j])
                for _ in range(2 if j < NT - 1 else 0):
                    if ri < len(R): a(R[ri]); ri += 1
                a(M[2*j + 1])
                for _ in range(2 if j < NT - 1 else 0):
                    if ri < len(R): a(R[ri]); ri += 1
            while ri < len(R): a(R[ri]); ri += 1
        for r in range(32): a(f"v_mov_b32 v{ACC+r}, 0")
        a(f"""
        v_mov_b32 v{vA1}, v10
        v_mov_b32 v{vB}, v15
        v_mov_b32 v{vFP}, v{vFA}
        s_mov_b32 s{sSL}, 0
        s_mov_b32 s{sI}, 0
        """)
        spin_ge(a, vFA, vFT, sFL, 4, 4)
        for l in reads(0, 9, 15): a(l)
        a(f"""
        s_mov_b64 exec, 1
        ds_add_u32 v{vFA}, v{vONE} offset:60
        s_mov_b64 exec, -1
        """)
        lloop = f"L_k1_loop{T}{nh}"; lslow = f"L_k1_slow{T}{nh}"; ljoin = f"L_k1_join{T}{nh}"; ldone = f"L_k1_done{T}{nh}"
        a(".p2align 6")
        a.label(lloop)
        a(f"""
        s_add_u32 s{sSL}, s{sSL}, {SLOT}
        s_cmp_eq_u32 s{sSL}, {NSLOT*SLOT}
        s_cselect_b32 s{sSL}, 0, s{sSL}
        v_add_u32 v{vA0n}, s{sSL}, v9
        v_add_u32 v{vBn}, s{sSL}, v15
        """)
        inter(mfmas(0), [f"ds_read_b32 v{vFT}, v{vFP} offset:8"] + reads(1, vA1, vB), 1)
        a(f"""
        s_waitcnt lgkmcnt({NB + 2})
        v_readfirstlane_b32 s{sFL}, v{vFT}
        v_add_u32 v{vA1}, s{sSL}, v10
        v_mov_b32 v{vB}, v{vBn}
        s_cmp_ge_u32 s{sFL}, 4
        s_cbranch_scc0 {lslow}
        """)
        inter(mfmas(1), reads(0, vA0n, vBn))
        a(f"""
        s_mov_b64 exec, 1
        ds_add_u32 v{vFP}, v{vONE} offset:36
        s_mov_b64 exec, -1
        """)
        a.label(ljoin)
        a(f"""
        v_add_u32 v{vFP}, 4, v{vFP}
        s_add_u32 s{sI}, s{sI}, 1
        s_cmp_lt_u32 s{sI}, 7
        s_cbranch_scc1 {lloop}
        s_branch {ldone}
        """)
        a.label(lslow)
        inter(mfmas(1), [])
        a(f"""
        s_mov_b64 exec, 1
        ds_add_u32 v{vFP}, v{vONE} offset:36
        s_mov_b64 exec, -1
        """)
        spin_ge(a, vFP, vFT, sFL, 8, 4)
        for l in reads(0, vA0n, vBn): a(l)
        a(f"""
        s_mov_b64 exec, 1
        ds_add_u32 v{vFA}, v{vONE} offset:60
        s_mov_b64 exec, -1
        s_branch {ljoin}
        """)
        a.label(ldone)
        a("s_nop 7")
    def epi_T0(nh):
        NT = 4 - nh
        lq = a.newlabel("k1dft")
        a(f"""
        s_cmp_eq_u32 s{sTY}, 3
        s_cbranch_scc1 {lq}
        """)
        for j in range(NT):
            for i in range(2):
                d = ACC + (i*4 + j)*4
                for r in range(4):
                    a(f"v_mul_f32 v{d+r}, s{sSC}, v{d+r}")
                a(f"v_cvt_pk_bf16_f32 v{d}, v{d}, v{d+1}")
                a(f"v_cvt_pk_bf16_f32 v{d+1}, v{d+2}, v{d+3}")
                a(f"buffer_store_dwordx2 v[{d}:{d+1}], v{vEO+j}, s[{WS}:{WS+3}], s{sOB} offen offset:{i*256}")
        a("s_endpgm")
        a.label(lq)
        for j in range(NT):
            for i in range(2):
                d = ACC + (i*4 + j)*4
                a(f"v_cvt_pk_bf16_f32 v{d}, v{d}, v{d+1}")
                a(f"v_cvt_pk_bf16_f32 v{d+1}, v{d+2}, v{d+3}")
                a(f"buffer_store_dword v{d}, v{vEO}, s[{WS}:{WS+3}], s{sOB} offen offset:{i*512}")
                a(f"buffer_store_dword v{d+1}, v{vEO+1}, s[{WS}:{WS+3}], s{sOB} offen offset:{i*512}")
            a(f"s_add_u32 s{sOB}, s{sOB}, {8*X1S}")
        a("s_endpgm")
    def epi_T1(nh):
        NT = 4 - nh
        for j in range(NT):
            for i in range(2):
                d = ACC + (i*4 + j)*4
                a(f"v_cvt_pk_bf16_f32 v{d}, v{d}, v{d+1}")
                a(f"v_cvt_pk_bf16_f32 v{d+1}, v{d+2}, v{d+3}")
                a(f"buffer_store_dwordx2 v[{d}:{d+1}], v{vEO+j}, s[{WS}:{WS+3}], s{sOB} offen offset:{i*1024}")
        a("s_endpgm")
    a(f"""
    s_cmp_eq_u32 s{sTY}, 2
    s_cbranch_scc1 L_k1_v
    s_cmp_eq_u32 s{sNH}, 1
    s_cbranch_scc1 L_k1_t01
    """)
    eo_T0(0); mainloop(0, 0); epi_T0(0)
    a.label("L_k1_t01")
    eo_T0(1); mainloop(0, 1); epi_T0(1)
    a.label("L_k1_v")
    a(f"""
    s_cmp_eq_u32 s{sNH}, 1
    s_cbranch_scc1 L_k1_t11
    """)
    eo_T1(0); mainloop(1, 0); epi_T1(0)
    a.label("L_k1_t11")
    eo_T1(1); mainloop(1, 1); epi_T1(1)
    a.label("L_k1_end")
    a("s_endpgm")
    return a.text(), kdesc(name, NV, 64), f"; @launch kernel={name} grid=(256,1,1) block=(768,1,1) lds={K1_LDS}"
```

```python
from asmlib import *
from layout import *
from tables import FFT_A1, FFT_A2, FFT_TW1, FFT_TW2, FFT_SIZE
import struct, os
EXP = os.environ.get('K2EXP', 'oldmap')
def f2u(f): return struct.unpack("<I", struct.pack("<f", f))[0]

CH = 16384
NSLOT = 8
NCH = 16
LDS_T = NSLOT * CH
LDS_Y = LDS_T + 32 * 272
LDS_R = LDS_Y + 32 * 272
LDS_C = LDS_R + 64 * 144
K2_LDS = LDS_C + 128

def gen_k2():
    a = Asm()
    name = "k2_kernel"
    a.lines.append(khead(name))
    WS, TB, XS, GW = 4, 8, 12, 16
    sW, sH, sQB, sT0, sT1, sT2, sT3 = 30, 31, 32, 33, 34, 35, 36
    sKVO, sM0, sRT, sKH = 37, 38, 39, 40
    sCNT = 41
    vLANE = 1
    vT0, vT1, vT2, vT3 = 2, 3, 4, 5
    MAP = f"""    s_and_b32 s{sT0}, s2, 7
    s_lshl_b32 s{sT0}, s{sT0}, 1
    v_readfirstlane_b32 s{sW}, v{vT0}
    s_bfe_u32 s{sT1}, s2, 0x10003
    s_add_u32 s{sH}, s{sT0}, s{sT1}
    s_lshr_b32 s{sQB}, s2, 4
""" if 'oldmap' in EXP else f"""    s_bfe_u32 s{sT0}, s2, 0x20001
    s_lshl_b32 s{sT0}, s{sT0}, 2
    v_readfirstlane_b32 s{sW}, v{vT0}
    s_bfe_u32 s{sT1}, s2, 0x20003
    s_add_u32 s{sH}, s{sT0}, s{sT1}
    s_and_b32 s{sT0}, s2, 1
    s_lshl_b32 s{sT0}, s{sT0}, 3
    s_lshr_b32 s{sQB}, s2, 5
    s_add_u32 s{sQB}, s{sQB}, s{sT0}
"""
    a(f"""
    s_cmp_ge_u32 s2, 256
    s_cbranch_scc1 L_k2_end
    s_load_dwordx2 s[24:25], s[0:1], 72
    s_load_dwordx2 s[26:27], s[0:1], 0
    s_load_dwordx2 s[28:29], s[0:1], 48
    s_getpc_b64 s[20:21]
    s_add_u32 s20, s20, tbl_fft@rel32@lo+4
    s_addc_u32 s21, s21, tbl_fft@rel32@hi+12
    v_and_b32 v{vLANE}, 63, v0
    v_lshrrev_b32 v{vT0}, 6, v0
{MAP}
    s_waitcnt lgkmcnt(0)
    """)
    srd(a, WS, "s24", "s25", WS_USED)
    srd(a, TB, "s20", "s21", FFT_SIZE)
    srd(a, XS, "s26", "s27", 2048*896)
    srd(a, GW, "s28", "s29", 896)
    a(f"""
    s_cmp_ge_u32 s{sW}, 8
    s_cbranch_scc1 L_k2_fft
    """)
    vDMA, vK, vV, vCA = 6, 7, 8, 9
    vONE, vFL = 14, 15
    sKVB, sFL, sC, sSLOT, sQP = 44, 45, 46, 47, 48
    Q, KF, VF, S, P, O = 16, 32, 48, 64, 96, 112
    QLDS = 7 * CH
    a(f"""
    v_lshlrev_b32 v{vT0}, 4, v{vLANE}
    s_lshl_b32 s{sM0}, s{sW}, 11
    v_add_u32 v{vDMA}, s{sM0}, v{vT0}
    s_lshl_b32 s{sKVB}, s{sH}, 18
    s_add_u32 s{sKVB}, s{sKVB}, {KV}
    s_and_b32 s{sKVO}, s2, {0 if 'oldmap' in EXP else 1}
    s_lshl_b32 s{sKVO}, s{sKVO}, 17
    s_mov_b32 s{sSLOT}, s{sM0}
    """)
    def dma(tag):
        a(f"s_mov_b32 m0, s{sSLOT}")
        a(f"s_add_u32 s{sT3}, s{sKVB}, s{sKVO}")
        a.vmem(f"buffer_load_dwordx4 v{vDMA}, s[{WS}:{WS+3}], s{sT3} offen lds", tag)
        a.vmem(f"buffer_load_dwordx4 v{vDMA}, s[{WS}:{WS+3}], s{sT3} offen offset:1024 lds", tag)
        a(f"s_add_u32 s{sKVO}, s{sKVO}, {CH}")
        a(f"s_and_b32 s{sKVO}, s{sKVO}, 0x3ffff")
        a(f"s_add_u32 s{sSLOT}, s{sSLOT}, {CH}")
        a(f"s_and_b32 s{sSLOT}, s{sSLOT}, {NSLOT*CH - 1}")
    dma("c0")
    a(f"""
    s_lshl_b32 s{sT1}, s{sH}, 6
    s_lshl_b32 s{sT0}, s{sQB}, 2
    s_add_u32 s{sT1}, s{sT1}, s{sT0}
    s_lshl_b32 s{sT1}, s{sT1}, 11
    s_lshl_b32 s{sT2}, s{sW}, 10
    s_add_u32 s{sT1}, s{sT1}, s{sT2}
    s_add_u32 m0, s{sT2}, {QLDS}
    s_and_b32 s{sQP}, s{sW}, 1
    """)
    a.vmem(f"buffer_load_dwordx4 v{vT0}, s[{WS}:{WS+3}], s{sT1} offen lds", "q")
    dma("c1")
    a(f"""
    s_add_u32 s{sKVO}, s{sKVO}, {4*CH}
    s_and_b32 s{sKVO}, s{sKVO}, 0x3ffff
    s_add_u32 s{sSLOT}, s{sSLOT}, {4*CH}
    """)
    a(f"""
    s_lshr_b32 s{sKH}, s{sW}, 1
    s_add_u32 s{sKH}, s{sKH}, 2
    s_and_b32 s{sKH}, s{sKH}, 3
    s_lshl_b32 s{sT1}, s{sKH}, 12
    v_add_u32 v{vV}, s{sT1}, v{vT0}
    v_add_u32 v{vK}, {2*CH}, v{vV}
    v_mov_b32 v{vCA}, {LDS_C}
    v_mov_b32 v{vONE}, 1
    v_and_b32 v{vT2}, 31, v{vLANE}
    v_lshlrev_b32 v{vT1}, 2, v{vT2}
    v_add_u32 v{vT1}, {LDS_C}, v{vT1}
    v_add_u32 v{vT2}, -2, v{vT2}
    v_cmp_gt_u32 vcc, 6, v{vT2}
    v_mov_b32 v{vT2}, 0
    v_mov_b32 v{vFL}, 8
    v_cndmask_b32 v{vT2}, v{vT2}, v{vFL}, vcc
    ds_write_b32 v{vT1}, v{vT2}
    s_waitcnt lgkmcnt(0)
    s_barrier
    s_lshl_b32 s{sT1}, s{sQP}, 12
    s_add_u32 s{sT1}, s{sT1}, {QLDS}
    v_add_u32 v{vT1}, s{sT1}, v{vT0}
    s_lshl_b32 s{sRT}, s{sQB}, 2
    s_lshl_b32 s{sT1}, s{sQP}, 1
    s_add_u32 s{sRT}, s{sRT}, s{sT1}
    """)
    for r in range(32): a(f"v_mov_b32 v{O+r}, 0")
    for r in range(8): a(f"v_mov_b32 v{P+8+r}, 0")
    for r in range(8): a(f"v_mov_b32 v{VF+8+r}, 0")
    def rd2(dst, base, off):
        for f in range(2):
            a(f"ds_read_b128 {vr(dst + f*4, 4)}, v{base} offset:{off + f*1024}")
    def qk(sb, kb, qb, f):
        d = vr(S + sb*16, 16)
        c = "0" if f == 0 else d
        return f"v_mfma_f32_32x32x16_bf16 {d}, {vr(KF + kb*8 + f*4, 4)}, {vr(Q + qb*8 + f*4, 4)}, {c}"
    def pv(ob, vb, pb, f):
        d = vr(O + ob*16, 16)
        return f"v_mfma_f32_32x32x16_bf16 {d}, {vr(VF + vb*8 + f*4, 4)}, {vr(P + pb*8 + f*4, 4)}, {d}"
    a.wait_vm(["c0", "q", "c1"])
    a(f"""
    s_mov_b64 exec, 1
    ds_add_u32 v{vCA}, v{vONE} offset:64
    s_mov_b64 exec, -1
    L_k2_b0:
    ds_read_b32 v{vFL}, v{vCA} offset:64
    s_waitcnt lgkmcnt(0)
    v_readfirstlane_b32 s{sFL}, v{vFL}
    s_cmp_ge_u32 s{sFL}, 8
    s_cbranch_scc0 L_k2_b0
    """)
    rd2(KF, vV, 0)
    rd2(Q, vT1, 0); rd2(Q + 8, vT1, 2048)
    a(f"""
    s_mov_b32 s{sC}, 0
    s_waitcnt lgkmcnt(0)
    """)
    a(qk(0, 0, 0, 0)); a(qk(0, 0, 0, 1))
    a("s_nop 7")
    a.vm = []; a.lg = []
    def trip(kind):
        lab = f"L_k2_loop{kind}"
        a(".p2align 6")
        a.label(lab)
        if "trips" in EXP and kind == 0:
            for T, st in ((0, 0), (1, 2), (2, 3), (4, 4)):
                l = a.newlabel("st")
                a(f"s_cmp_lg_u32 s{sC}, {T}")
                a(f"s_cbranch_scc1 {l}")
                a.label(l)
        for it in range(4):
            par = it % 2
            if it == 0:
                rd2(KF + 8, vV, CH); rd2(VF, vV, 2048)
            elif it == 2:
                a(f"""
                s_cmp_ge_u32 s{sFL}, 16
                s_cbranch_scc0 L_k2_spin{kind}
                L_k2_flagok{kind}:
                """)
                rd2(KF, vK, 0); rd2(VF + 8, vV, CH + 2048)
            elif it == 1:
                a("s_waitcnt lgkmcnt(1)")
            else:
                a("s_waitcnt lgkmcnt(0)")
            s0 = S + par*16; p0 = P + par*8
            e = [f"v_exp_f32 v{s0+k}, v{s0+k}" for k in range(16)]
            cv = [f"v_cvt_pk_bf16_f32 v{p0+k}, v{s0+2*k}, v{s0+2*k+1}" for k in range(8)]
            kb = [0, 1, 1, 0][it]; vb = [1, 0, 0, 1][it]
            m = [qk(1-par, kb, 1-par, 0), pv(1-par, vb, 1-par, 0), qk(1-par, kb, 1-par, 1), pv(1-par, vb, 1-par, 1)]
            for g in range(4):
                a(e[4*g])
                a(m[g])
                a(e[4*g+1]); a(e[4*g+2]); a(e[4*g+3])
                a(cv[2*g]); a(cv[2*g+1])
                if it == 0 and g == 3:
                    a(f"""
                    s_waitcnt vmcnt({4 if kind == 0 else 0})
                    s_mov_b64 exec, 1
                    ds_add_u32 v{vCA}, v{vONE}
                    s_mov_b64 exec, -1
                    """)
                if it == 1 and g == 1:
                    a(f"ds_read_b32 v{vFL}, v{vCA}")
                if it == 1 and g == 3:
                    a(f"""
                    s_waitcnt lgkmcnt(0)
                    v_readfirstlane_b32 s{sFL}, v{vFL}
                    """)
                if kind == 0 and it >= 2 and g == 1:
                    dma("x")
                if it == 3 and g == 2:
                    a(f"""
                    v_mov_b32 v{vV}, v{vK}
                    v_add_u32 v{vK}, {2*CH}, v{vK}
                    v_and_b32 v{vK}, {NSLOT*CH - 1}, v{vK}
                    v_add_u32 v{vCA}, 4, v{vCA}
                    s_add_u32 s{sC}, s{sC}, 1
                    """)
        a(f"""
        s_cmp_lt_u32 s{sC}, {5 if kind == 0 else 8}
        s_cbranch_scc1 {lab}
        """)
    def spin(kind):
        a(f"""
        L_k2_spin{kind}:
        s_sleep 1
        ds_read_b32 v{vFL}, v{vCA}
        s_waitcnt lgkmcnt(0)
        v_readfirstlane_b32 s{sFL}, v{vFL}
        s_cmp_ge_u32 s{sFL}, 16
        s_cbranch_scc0 L_k2_spin{kind}
        s_branch L_k2_flagok{kind}
        """)
    trip(0)
    trip(1)
    a("s_branch L_k2_loopdone")
    spin(0); spin(1)
    a.label("L_k2_loopdone")
    a.vm = []; a.lg = []
    a(pv(1, 1, 1, 0)); a(pv(1, 1, 1, 1))
    a(f"""
    s_mul_i32 s{sT0}, s{sQP}, {6*4096}
    v_lshlrev_b32 v{vT0}, 4, v{vLANE}
    v_add_u32 v{vT0}, s{sT0}, v{vT0}
    s_lshl_b32 s{sT0}, s{sQP}, 3
    s_add_u32 s{sT0}, s{sT0}, {LDS_C + 80}
    v_mov_b32 v{vCA}, s{sT0}
    s_cmp_ge_u32 s{sKH}, 2
    s_cbranch_scc1 L_k2_send2
    s_cmp_eq_u32 s{sKH}, 1
    s_cbranch_scc1 L_k2_own1
    """)
    def send(X, base, off):
        for r in range(4):
            a(f"ds_write_b128 v{base}, {vr(O + X*16 + 4*r, 4)} offset:{off + X*3*4096 + r*1024}")
    def signal(Xs, off):
        a("s_waitcnt lgkmcnt(0)")
        a("s_mov_b64 exec, 1")
        for X in Xs: a(f"ds_add_u32 v{vCA}, v{vONE} offset:{off + 4*X}")
        a("s_mov_b64 exec, -1")
    vOO = 10
    def waitc(lab, off, val):
        a(f"""
        {lab}w:
        ds_read_b32 v{vFL}, v{vCA} offset:{off}
        s_waitcnt lgkmcnt(0)
        v_readfirstlane_b32 s{sFL}, v{vFL}
        s_cmp_ge_u32 s{sFL}, {val}
        s_cbranch_scc1 {lab}k
        s_sleep 1
        s_branch {lab}w
        {lab}k:
        """)
    def own(X):
        TMP = KF
        a("s_nop 7")
        send(1 - X, vT0, 0)
        signal([1 - X], 0)
        waitc(f"L_k2_e{X}", 32 + 4*X, 2)
        for n in (1, 2):
            for r in range(4):
                a(f"ds_read_b128 {vr(TMP + n*16 + 4*r, 4)}, v{vT0} offset:{(X*3 + n)*4096 + r*1024}")
        a(f"""
        v_lshrrev_b32 v{vT1}, 5, v{vLANE}
        s_mul_i32 s{sT1}, s{sH}, 7
        v_add_u32 v{vT1}, s{sT1}, v{vT1}
        v_and_b32 v{vT2}, 1, v{vT1}
        v_lshrrev_b32 v{vT1}, 1, v{vT1}
        v_lshlrev_b32 v{vT1}, 9, v{vT1}
        v_lshl_add_u32 v{vT1}, v{vT2}, 3, v{vT1}
        v_and_b32 v{vT2}, 31, v{vLANE}
        v_lshl_add_u32 v{vOO}, v{vT2}, 4, v{vT1}
        v_mov_b32 v{vT2}, 0x7fffffff
        v_cmp_gt_u32 vcc, 32, v{vLANE}
        s_add_u32 s{sRT}, s{sRT}, {X}
        s_mul_i32 s{sT1}, s{sRT}, 28672
        s_add_u32 s{sT1}, s{sT1}, {OF}
        v_cndmask_b32 v{vOO+1}, v{vT2}, v{vOO}, vcc
        s_mov_b32 s{sKH}, {X}
        """)
        waitc(f"L_k2_p{X}", 4*X, 1)
        for r in range(4):
            a(f"ds_read_b128 {vr(TMP + 4*r, 4)}, v{vT0} offset:{(X*3)*4096 + r*1024}")
        for r in range(0, 16, 2): a(f"v_pk_add_f32 {vr(O+r,2)}, {vr(O+X*16+r,2)}, {vr(TMP+16+r,2)}")
        for r in range(0, 16, 2): a(f"v_pk_add_f32 {vr(O+r,2)}, {vr(O+r,2)}, {vr(TMP+32+r,2)}")
        a("s_waitcnt lgkmcnt(0)")
        for r in range(0, 16, 2): a(f"v_pk_add_f32 {vr(O+r,2)}, {vr(O+r,2)}, {vr(TMP+r,2)}")
    a.label("L_k2_own0")
    own(0)
    a("s_branch L_k2_final")
    a.label("L_k2_send2")
    a(f"""
    s_sub_u32 s{sT0}, s{sKH}, 1
    s_lshl_b32 s{sT0}, s{sT0}, 12
    v_add_u32 v{vT0}, s{sT0}, v{vT0}
    s_nop 7
    """)
    send(0, vT0, 0); send(1, vT0, 0)
    signal([0, 1], 32)
    a("s_waitcnt lgkmcnt(0)")
    a("s_endpgm")
    a.label("L_k2_own1")
    own(1)
    a.label("L_k2_final")
    vL, vL2, vC = 14, 15, 4
    a(f"""
    v_mov_b32 v{vL}, v{O+12}
    v_mov_b32 v{vL2}, v{O+12}
    v_pk_mul_f32 v[2:3], {vr(O+12,2)}, 0
    v_pk_mul_f32 v[4:5], {vr(O,2)}, 0
    v_permlane32_swap_b32 v{vL}, v{vL2}
    v_pk_fma_f32 v[2:3], {vr(O+14,2)}, 0, v[2:3]
    """)
    for r in range(2, 12, 2):
        a(f"v_pk_fma_f32 v[4:5], {vr(O+r,2)}, 0, v[4:5]")
    a(f"""
    v_rcp_f32 v{vL}, v{vL2}
    v_add_f32 v2, v2, v3
    v_cmp_gt_u32 vcc, 32, v{vLANE}
    v_add_f32 v4, v4, v5
    v_add_f32 v4, v4, v{vL2}
    v_cndmask_b32 v2, 0, v2, vcc
    v_mov_b32 v{vL2}, v{vL}
    v_add_f32 v4, v4, v2
    s_cmp_eq_u32 s{sKH}, 2
    s_cbranch_scc1 L_k2_store
    v_mov_b32 v2, {f2u(2.0**-24)}
    v_cmp_ngt_f32 vcc, v4, v2
    v_mov_b32 v2, {f2u(2.0**40)}
    v_cmp_nlt_f32 s[42:43], v4, v2
    s_or_b64 vcc, vcc, s[42:43]
    s_cbranch_vccnz L_k2_fallback
    """)
    a.label("L_k2_store")
    for qd in range(4):
        a(f"v_pk_mul_f32 {vr(O+4*qd,2)}, {vr(O+4*qd,2)}, v[{vL}:{vL2}]")
        a(f"v_pk_mul_f32 {vr(O+4*qd+2,2)}, {vr(O+4*qd+2,2)}, v[{vL}:{vL2}]")
        a(f"v_cvt_pk_bf16_f32 v{O+4*qd}, v{O+4*qd}, v{O+4*qd+1}")
        a(f"v_cvt_pk_bf16_f32 v{O+4*qd+1}, v{O+4*qd+2}, v{O+4*qd+3}")
        vo = vOO + 1 if qd == 3 else vOO
        a(f"buffer_store_dwordx2 {vr(O+4*qd, 2)}, v{vo}, s[{WS}:{WS+3}], s{sT1} offen offset:{qd*512}")
    a("s_endpgm")
    a.label("L_k2_fallback")
    vM, vMN, vAL = 6, 7, 8
    a(f"""
    s_cmp_eq_u32 s{sKH}, 0
    s_cbranch_scc1 L_k2_fbq
    """)
    for r in range(8): a(f"v_mov_b32 v{Q+r}, v{Q+8+r}")
    a(f"""
    L_k2_fbq:
    s_mov_b32 s{sKH}, 2
    s_lshl_b32 s{sKVO}, s{sH}, 18
    s_add_u32 s{sKVO}, s{sKVO}, {KV}
    v_lshlrev_b32 v{vT0}, 4, v{vLANE}
    v_mov_b32 v{vM}, 0xff800000
    s_mov_b32 s{sCNT}, 0
    """)
    for r in range(16): a(f"v_mov_b32 v{O+r}, 0")
    a.label("L_k2_fbloop")
    for f in range(4):
        dst = (KF + f*4) if f < 2 else (VF + (f-2)*4)
        a(f"buffer_load_dwordx4 {vr(dst,4)}, v{vT0}, s[{WS}:{WS+3}], s{sKVO} offen offset:{f*1024}")
    a(f"""
    s_waitcnt vmcnt(0)
    v_mfma_f32_32x32x16_bf16 {vr(S,16)}, {vr(KF,4)}, {vr(Q,4)}, 0
    v_mfma_f32_32x32x16_bf16 {vr(S,16)}, {vr(KF+4,4)}, {vr(Q+4,4)}, {vr(S,16)}
    s_nop 15
    s_nop 3
    v_mov_b32 v{vMN}, v{vM}
    """)
    for r in range(0, 16, 2):
        a(f"v_max3_f32 v{vMN}, v{S+r}, v{S+r+1}, v{vMN}")
    a(f"""
    v_mov_b32 v{vT1}, v{vMN}
    v_mov_b32 v{vT2}, v{vMN}
    s_nop 1
    v_permlane32_swap_b32 v{vT1}, v{vT2}
    s_nop 1
    v_max3_f32 v{vMN}, v{vMN}, v{vT1}, v{vT2}
    v_sub_f32 v{vAL}, v{vM}, v{vMN}
    v_exp_f32 v{vAL}, v{vAL}
    v_mov_b32 v{vM}, v{vMN}
    """)
    for r in range(16):
        a(f"v_sub_f32 v{S+r}, v{S+r}, v{vMN}")
        a(f"v_exp_f32 v{S+r}, v{S+r}")
    for r in range(16):
        a(f"v_mul_f32 v{O+r}, v{O+r}, v{vAL}")
    for k in range(8):
        a(f"v_cvt_pk_bf16_f32 v{P+k}, v{S+2*k}, v{S+2*k+1}")
    a(f"""
    s_nop 1
    v_mfma_f32_32x32x16_bf16 {vr(O,16)}, {vr(VF,4)}, {vr(P,4)}, {vr(O,16)}
    v_mfma_f32_32x32x16_bf16 {vr(O,16)}, {vr(VF+4,4)}, {vr(P+4,4)}, {vr(O,16)}
    s_add_u32 s{sKVO}, s{sKVO}, 4096
    s_add_u32 s{sCNT}, s{sCNT}, 1
    s_nop 15
    s_nop 3
    s_cmp_lt_u32 s{sCNT}, 64
    s_cbranch_scc1 L_k2_fbloop
    s_branch L_k2_final
    """)

    a.label("L_k2_fft")
    a.vm = []; a.lg = []
    sFW, sK, sSL, sMT1, sNT2 = 37, 38, 39, 40, 41
    B1, A1, TW1, TW2, A2, WR, ACC, B2 = 16, 32, 48, 64, 80, 112, 120, 136
    PK = 16
    vL16, vA, vB, vC2 = 6, 7, 8, 9
    def fsync(n):
        lsp = a.newlabel("k2fs"); lok = a.newlabel("k2fo")
        a(f"""
        s_waitcnt lgkmcnt(0)
        v_mov_b32 v{vA}, {LDS_C}
        v_mov_b32 v{vB}, 1
        s_mov_b64 exec, 1
        ds_add_u32 v{vA}, v{vB} offset:{96 + 4*n}
        s_mov_b64 exec, -1
        """)
        a.label(lsp)
        a(f"""
        ds_read_b32 v{vB}, v{vA} offset:{96 + 4*n}
        s_waitcnt lgkmcnt(0)
        v_readfirstlane_b32 s45, v{vB}
        s_cmp_ge_u32 s45, 4
        s_cbranch_scc1 {lok}
        s_sleep 1
        s_branch {lsp}
        """)
        a.label(lok)
    a(f"""
    {'s_setprio 3' if 'prio' in EXP else ''}
    s_sub_u32 s{sFW}, s{sW}, 8
    v_lshlrev_b32 v{vL16}, 4, v{vLANE}
    s_lshl_b32 s{sT0}, s{sH}, 18
    s_add_u32 s{sT0}, s{sT0}, {KV}
    s_lshl_b32 s{sT2}, s{sFW}, 12
    s_add_u32 s{sT0}, s{sT0}, s{sT2}
    s_and_b32 s{sT1}, s2, {0 if 'oldmap' in EXP else 1}
    s_lshl_b32 s{sT1}, s{sT1}, 17
    s_add_u32 s{sT0}, s{sT0}, s{sT1}
    s_barrier
    """)
    for c in range(2, 6):
        a(f"s_add_u32 m0, s{sT2}, {c*CH}")
        a(f"s_add_u32 s{sT1}, s{sT0}, {c*CH}")
        for f in range(4):
            a.vmem(f"buffer_load_dwordx4 v{vL16}, s[{WS}:{WS+3}], s{sT1} offen offset:{f*1024} lds", f"kv{c//2}")
    a(f"""
    v_mov_b32 v{vA}, {LDS_C}
    v_mov_b32 v{vB}, 2
    """)
    for u in (1, 2):
        a.wait_vm(f"kv{u}")
        a(f"""
        s_mov_b64 exec, 1
        ds_add_u32 v{vA}, v{vB} offset:{4*(u-1)}
        s_mov_b64 exec, -1
        """)
    a(f"""
    s_waitcnt lgkmcnt(0)
    {"s_endpgm" if "nofft" in EXP else ""}
    """)
    def prefetch(track):
        a(f"""
        s_load_dwordx2 s[50:51], s[0:1], 40
        s_getpc_b64 s[52:53]
        s_add_u32 s52, s52, tbl_gf@rel32@lo+4
        s_addc_u32 s53, s53, tbl_gf@rel32@hi+12
        s_getpc_b64 s[54:55]
        s_add_u32 s54, s54, k3_kernel@rel32@lo+4
        s_addc_u32 s55, s55, k3_kernel@rel32@hi+12
        s_lshr_b32 s{sT0}, s2, 3
        s_lshl_b32 s{sT0}, s{sT0}, 2
        s_add_u32 s{sT0}, s{sT0}, s{sFW}
        s_mul_i32 s{sT0}, s{sT0}, 3136
        v_lshlrev_b32 v{vA}, 7, v{vLANE}
        v_min_u32 v{vB}, 3200, v{vA}
        s_waitcnt lgkmcnt(0)
        """)
        srd(a, 56, "s50", "s51", 448*896)
        srd(a, 60, "s52", "s53", 448*896)
        a.vmem(f"buffer_load_dword v{vC2}, v{vB}, s[56:59], s{sT0} offen", "pf")
        a.vmem(f"buffer_load_dword v{vC2}, v{vB}, s[60:63], s{sT0} offen", "pf")
        srd(a, 56, "s54", "s55", "L_k3_end-k3_kernel")
        a.vmem(f"buffer_load_dword v{vC2}, v{vA}, s[56:59], 0 offen", "pf")
    a(f"""
    s_cmp_ge_u32 s2, 225
    s_cbranch_scc1 L_k2_pfonly
    s_lshr_b32 s{sMT1}, s{sFW}, 1
    s_and_b32 s{sNT2}, s{sFW}, 1
    s_cmp_eq_u32 s2, 224
    s_cselect_b32 s{sSL}, 0, s2
    s_mul_i32 s{sT0}, s{sSL}, {X1S}
    s_lshl_b32 s{sT1}, s{sNT2}, 12
    s_add_u32 s{sT0}, s{sT0}, s{sT1}
    s_add_u32 s{sT0}, s{sT0}, {X1F}
    s_lshl_b32 s{sT1}, s{sMT1}, 12
    s_lshl_b32 s{sT2}, s{sFW}, 12
    s_add_u32 s{sT3}, s{sT2}, {FFT_TW1}
    """)
    for ks in range(4):
        a.vmem(f"buffer_load_dwordx4 {vr(B1+4*ks,4)}, v{vL16}, s[{WS}:{WS+3}], s{sT0} offen offset:{ks*1024}", "b1")
    for ks in range(4):
        a.vmem(f"buffer_load_dwordx4 {vr(A1+4*ks,4)}, v{vL16}, s[{TB}:{TB+3}], s{sT1} offen offset:{ks*1024}", "a1")
    for i in range(4):
        a.vmem(f"buffer_load_dwordx4 {vr(TW1+4*i,4)}, v{vL16}, s[{TB}:{TB+3}], s{sT3} offen offset:{i*1024}", "tw1")
    a(f"""
    s_lshl_b32 s{sT1}, s{sFW}, 13
    s_add_u32 s{sT1}, s{sT1}, {FFT_A2}
    s_add_u32 s{sT0}, s{sT1}, 4096
    s_add_u32 s{sT3}, s{sT2}, {FFT_TW2}
    """)
    for ks in range(8):
        so = sT1 if ks < 4 else sT0
        a.vmem(f"buffer_load_dwordx4 {vr(A2+4*ks,4)}, v{vL16}, s[{TB}:{TB+3}], s{so} offen offset:{(ks%4)*1024}", "a2")
    a(f"""
    v_and_b32 v{vT0}, 31, v{vLANE}
    v_lshrrev_b32 v{vT1}, 5, v{vLANE}
    v_lshlrev_b32 v{vT2}, 10, v{vT1}
    v_lshl_add_u32 v{vT2}, v{vT0}, 2, v{vT2}
    s_mul_i32 s{sT0}, s2, {WFS}
    s_lshl_b32 s{sT1}, s{sFW}, 11
    s_add_u32 s{sT0}, s{sT0}, s{sT1}
    s_add_u32 s{sT0}, s{sT0}, {WF}
    """)
    for p in range(8):
        a.vmem(f"buffer_load_dword v{WR+p}, v{vT2}, s[{WS}:{WS+3}], s{sT0} offen offset:{p*128}", "w")
    for i in range(4):
        a.vmem(f"buffer_load_dwordx4 {vr(TW2+4*i,4)}, v{vL16}, s[{TB}:{TB+3}], s{sT3} offen offset:{i*1024}", "tw2")
    if "nopf" not in EXP: prefetch(1)
    vW1, vR2, vWY, vW3, vR4, vZO = 10, 11, 12, 13, 14, 15
    a(f"""
    v_mul_u32_u24 v{vT2}, {8*272}, v{vT1}
    v_lshl_add_u32 v{vT2}, v{vT0}, 2, v{vT2}
    s_mul_i32 s{sT0}, s{sMT1}, {16*272}
    s_lshl_b32 s{sT1}, s{sNT2}, 7
    s_add_u32 s{sT0}, s{sT0}, s{sT1}
    s_add_u32 s{sT0}, s{sT0}, {LDS_T}
    v_add_u32 v{vW1}, s{sT0}, v{vT2}
    v_mul_u32_u24 v{vT2}, 272, v{vT0}
    v_lshl_add_u32 v{vT3}, v{vT1}, 4, v{vT2}
    v_add_u32 v{vR2}, {LDS_T}, v{vT3}
    v_lshl_add_u32 v{vT3}, v{vT1}, 5, v{vT2}
    s_lshl_b32 s{sT0}, s{sFW}, 6
    s_add_u32 s{sT0}, s{sT0}, {LDS_Y}
    v_add_u32 v{vWY}, s{sT0}, v{vT3}
    v_mul_u32_u24 v{vT2}, {8*144}, v{vT1}
    v_lshl_add_u32 v{vT2}, v{vT0}, 2, v{vT2}
    s_mul_i32 s{sT0}, s{sFW}, {16*144}
    s_add_u32 s{sT0}, s{sT0}, {LDS_R}
    v_add_u32 v{vW3}, s{sT0}, v{vT2}
    v_mul_u32_u24 v{vT2}, 144, v{vT0}
    v_lshl_add_u32 v{vT2}, v{vT1}, 4, v{vT2}
    s_mul_i32 s{sT0}, s{sNT2}, {32*144}
    s_add_u32 s{sT0}, s{sT0}, {LDS_R}
    v_add_u32 v{vR4}, s{sT0}, v{vT2}
    v_lshlrev_b32 v{vT2}, 4, v{vT0}
    v_lshl_add_u32 v{vZO}, v{vT1}, 10, v{vT2}
    """)
    a.wait_vm(["b1", "a1"])
    a(f"""
    s_cmp_eq_u32 s2, 0
    s_cbranch_scc1 L_k2_sp0
    s_cmp_eq_u32 s2, 224
    s_cbranch_scc0 L_k2_spdone
    """)
    for r in range(16): a(f"v_lshrrev_b32 v{B1+r}, 16, v{B1+r}")
    a("s_branch L_k2_spdone")
    a.label("L_k2_sp0")
    for r in range(16): a(f"v_and_b32 v{B1+r}, 0xffff, v{B1+r}")
    a.label("L_k2_spdone")
    a("s_nop 1")
    def mm(A, B, n):
        for ks in range(n):
            c = "0" if ks == 0 else vr(ACC, 16)
            a(f"v_mfma_f32_32x32x16_bf16 {vr(ACC,16)}, {vr(A+4*ks,4)}, {vr(B+4*ks,4)}, {c}")
    def cmul_tw(TW):
        for p in range(8):
            ar, ai, tr, ti = ACC+2*p, ACC+2*p+1, TW+2*p, TW+2*p+1
            a(f"""
            v_mul_f32 v{vT2}, v{ar}, v{tr}
            v_mul_f32 v{vT3}, v{ar}, v{ti}
            v_fma_f32 v{vT2}, -v{ai}, v{ti}, v{vT2}
            v_fmac_f32 v{vT3}, v{ai}, v{tr}
            v_cvt_pk_bf16_f32 v{PK+p}, v{vT2}, v{vT3}
            """)
    mm(A1, B1, 4)
    a.wait_vm("tw1")
    a("s_nop 15")
    cmul_tw(TW1)
    for p in range(8):
        a(f"ds_write_b32 v{vW1}, v{PK+p} offset:{p*272}")
    fsync(0)
    for ks in range(8):
        a.lds(f"ds_read_b128 {vr(B2+4*ks,4)}, v{vR2} offset:{ks*32}", f"b2_{ks}")
    a.wait_vm("a2")
    for ks in range(8):
        a.wait_lg(f"b2_{ks}")
        c = "0" if ks == 0 else vr(ACC, 16)
        a(f"v_mfma_f32_32x32x16_bf16 {vr(ACC,16)}, {vr(A2+4*ks,4)}, {vr(B2+4*ks,4)}, {c}")
    a.wait_vm("w")
    for p in range(8):
        a(f"v_lshlrev_b32 v{TW1+2*p}, 16, v{WR+p}")
        a(f"v_and_b32 v{TW1+2*p+1}, 0xffff0000, v{WR+p}")
    for p in range(8):
        ar, ai, tr, ti = ACC+2*p, ACC+2*p+1, TW1+2*p, TW1+2*p+1
        a(f"""
        v_mul_f32 v{vT2}, v{ar}, v{tr}
        v_mul_f32 v{vT3}, v{ar}, v{ti}
        v_fma_f32 v{vT2}, -v{ai}, v{ti}, v{vT2}
        v_fmac_f32 v{vT3}, v{ai}, v{tr}
        v_cvt_pk_bf16_f32 v{PK+p}, v{vT2}, -v{vT3}
        """)
    a(f"""
    ds_write_b128 v{vWY}, {vr(PK,4)}
    ds_write_b128 v{vWY}, {vr(PK+4,4)} offset:16
    """)
    fsync(1)
    for ks in range(8):
        a.lds(f"ds_read_b128 {vr(B2+4*ks,4)}, v{vR2} offset:{ks*32 + (LDS_Y-LDS_T)}", f"b3_{ks}")
    for ks in range(8):
        a.wait_lg(f"b3_{ks}")
        c = "0" if ks == 0 else vr(ACC, 16)
        a(f"v_mfma_f32_32x32x16_bf16 {vr(ACC,16)}, {vr(A2+4*ks,4)}, {vr(B2+4*ks,4)}, {c}")
    a.wait_vm("tw2")
    a("s_nop 15")
    cmul_tw(TW2)
    for p in range(8):
        a(f"ds_write_b32 v{vW3}, v{PK+p} offset:{p*144}")
    fsync(2)
    for ks in range(4):
        a.lds(f"ds_read_b128 {vr(B2+4*ks,4)}, v{vR4} offset:{ks*32}", f"b4_{ks}")
    for ks in range(4):
        a.wait_lg(f"b4_{ks}")
        c = "0" if ks == 0 else vr(ACC, 16)
        a(f"v_mfma_f32_32x32x16_bf16 {vr(ACC,16)}, {vr(A1+4*ks,4)}, {vr(B2+4*ks,4)}, {c}")
    a(f"""
    s_mul_i32 s{sT0}, s2, {2*ZTS}
    s_cmp_eq_u32 s2, 224
    s_cselect_b32 s{sT0}, {ZTS}, s{sT0}
    s_lshl_b32 s{sT1}, s{sNT2}, 9
    s_add_u32 s{sT0}, s{sT0}, s{sT1}
    s_lshl_b32 s{sT1}, s{sMT1}, 11
    s_add_u32 s{sT0}, s{sT0}, s{sT1}
    s_add_u32 s{sT0}, s{sT0}, {ZT}
    s_add_u32 s{sT1}, s{sT0}, {ZTS}
    s_nop 7
    """)
    for q in range(4):
        a(f"v_cvt_pk_bf16_f32 v{PK+q}, v{ACC+4*q}, v{ACC+4*q+2}")
        a(f"v_cvt_pk_bf16_f32 v{PK+4+q}, -v{ACC+4*q+1}, -v{ACC+4*q+3}")
    a(f"""
    buffer_store_dwordx4 {vr(PK,4)}, v{vZO}, s[{WS}:{WS+3}], s{sT0} offen
    s_cmp_eq_u32 s{sSL}, 0
    s_cbranch_scc1 L_k2_gate
    buffer_store_dwordx4 {vr(PK+4,4)}, v{vZO}, s[{WS}:{WS+3}], s{sT1} offen
    """)
    a.label("L_k2_gate")
    a("s_endpgm")
    a.label("L_k2_pfonly")
    if "nopf" not in EXP: prefetch(0)
    a("s_endpgm")
    a.label("L_k2_end")
    a("s_endpgm")
    return a.text(), kdesc(name, 168, 64), f"; @launch kernel={name} grid=(256,1,1) block=(768,1,1) lds={K2_LDS}"
```

```python
from asmlib import *
from layout import *
from k1 import spin_ge
import os
EXP = os.environ.get('K3EXP', '')
DEPTH = int(os.environ.get('K3DEPTH', '4'))
DPF = int(os.environ.get('K3DPF', '2'))

SLOT = 8192
NCH = 14
LDS_X = SLOT * NCH
LDS_F = LDS_X + 16384
K3_LDS = LDS_F + 128

def gen_k3():
    a = Asm()
    name = "k3_kernel"
    a.lines.append(khead(name))
    WS, WO, GF, OUT = 4, 8, 12, 16
    sW, sRB, sCT, sT0, sT1, sT2, sT3, sJ, sFL = 30, 31, 32, 33, 34, 35, 36, 37, 38
    vLANE = 1
    vT0, vT1, vT2, vT3 = 2, 3, 4, 5
    vFA, vFT, vONE, vL16 = 6, 7, 8, 9
    a(f"""
    s_cmp_ge_u32 s2, 224
    s_cbranch_scc1 L_k3_end
    s_load_dwordx2 s[24:25], s[0:1], 72
    s_load_dwordx2 s[26:27], s[0:1], 40
    s_load_dwordx2 s[28:29], s[0:1], 56
    s_getpc_b64 s[20:21]
    s_add_u32 s20, s20, tbl_gf@rel32@lo+4
    s_addc_u32 s21, s21, tbl_gf@rel32@hi+12
    v_and_b32 v{vLANE}, 63, v0
    v_lshrrev_b32 v{vT0}, 6, v0
    s_and_b32 s{sT0}, s2, 7
    s_lshr_b32 s{sT1}, s2, 3
    v_readfirstlane_b32 s{sW}, v{vT0}
    s_lshl_b32 s{sRB}, s{sT0}, 2
    s_and_b32 s{sT2}, s{sT1}, 3
    s_add_u32 s{sRB}, s{sRB}, s{sT2}
    s_lshr_b32 s{sCT}, s{sT1}, 2
    s_and_b32 s{sJ}, s{sW}, 3
    v_lshlrev_b32 v{vL16}, 4, v{vLANE}
    v_mov_b32 v{vFA}, {LDS_F}
    v_mov_b32 v{vONE}, 1
    s_cmp_ge_u32 s{sW}, 4
    s_cbranch_scc0 L_k3_compute
    """)
    vTO, vTF = 10, 11
    sM0T, sWOb, sZTb = 41, 43, 44
    a(f"""
    v_lshrrev_b32 v{vT0}, 3, v{vLANE}
    v_and_b32 v{vT1}, 7, v{vLANE}
    v_bfe_u32 v{vT2}, v{vLANE}, 4, 1
    v_lshlrev_b32 v{vT2}, 2, v{vT2}
    v_xor_b32 v{vT1}, v{vT1}, v{vT2}
    v_lshlrev_b32 v{vT1}, 4, v{vT1}
    v_mul_u32_u24 v{vT2}, 896, v{vT0}
    v_add_u32 v{vTO}, v{vT2}, v{vT1}
    v_mul_u32_u24 v{vT2}, {ZTS}, v{vT0}
    v_add_u32 v{vTF}, v{vT2}, v{vT1}
    s_lshl_b32 s{sM0T}, s{sJ}, 11
    s_mul_i32 s{sWOb}, s{sJ}, {16*896}
    s_lshl_b32 s{sT0}, s{sCT}, 7
    s_add_u32 s{sWOb}, s{sWOb}, s{sT0}
    s_mul_i32 s{sZTb}, s{sJ}, {16*ZTS}
    s_lshl_b32 s{sT0}, s{sRB}, 7
    s_add_u32 s{sZTb}, s{sZTb}, s{sT0}
    s_add_u32 s{sZTb}, s{sZTb}, {ZT}
    """)
    a("s_waitcnt lgkmcnt(0)")
    srd(a, WS, "s24", "s25", WS_USED)
    srd(a, WO, "s26", "s27", 448*896)
    def issue(i):
        slot = i * SLOT
        br = i & 1; c = i >> 1
        tag = f"c{i}"
        rs = 896 if br == 0 else ZTS
        T = WO if br == 0 else WS
        vT = vTO if br == 0 else vTF
        for ii in range(2):
            a(f"s_add_u32 m0, s{sM0T}, {slot + ii*1024}")
            a(f"s_add_u32 s{sT0}, s{sWOb if br == 0 else sZTb}, {(64*c + 8*ii)*rs}")
            a.vmem(f"buffer_load_dwordx4 v{vT}, s[{T}:{T+3}], s{sT0} offen lds", tag)
    issue(0); issue(1)
    a("s_barrier")
    for i in range(2, DEPTH): issue(i)
    for i in range(NCH):
        a.wait_vm(f"c{i}")
        a(f"""
        s_mov_b64 exec, 1
        ds_add_u32 v{vFA}, v{vONE} offset:{4*i}
        s_mov_b64 exec, -1
        """)
        if i == 0: a.comment("STAMP2")
        if i == 6: a.comment("STAMP3")
        if i == 13: a.comment("STAMP4")
        n = i + DEPTH
        if n < NCH: issue(n)
    a("s_waitcnt lgkmcnt(0)")
    a("s_endpgm")

    a.label("L_k3_compute")
    a.vm = []; a.lg = []
    vR = [[10, 11], [12, 13]]
    vG, vOO, vXW, vXR = 14, 16, 17, 18
    TF, ACC, DF = 24, 88, 120
    NV = 232
    sBR, sIDX, sD = 40, 41, 42
    DD = 44
    a(f"""
    v_and_b32 v{vT0}, 31, v{vLANE}
    v_lshl_add_u32 v{vT1}, v{vT0}, 2, v{vFA}
    v_mov_b32 v{vT2}, 0
    ds_write_b32 v{vT1}, v{vT2}
    s_lshr_b32 s{sBR}, s{sW}, 1
    s_and_b32 s{sIDX}, s{sW}, 1
    s_cmp_eq_u32 s{sBR}, 0
    s_cselect_b32 s{sT0}, s{sRB}, s{sCT}
    s_cselect_b32 s{sT1}, {OF}, 0
    s_lshl_b32 s{sT0}, s{sT0}, 1
    s_add_u32 s{sT0}, s{sT0}, s{sIDX}
    s_mul_i32 s{sD}, s{sT0}, 28672
    s_add_u32 s{sD}, s{sD}, s{sT1}
    s_waitcnt lgkmcnt(0)
    s_mov_b32 s{DD+2}, {WS_USED}
    s_cmp_eq_u32 s{sBR}, 0
    s_cselect_b32 s{DD}, s24, s20
    s_cselect_b32 s{DD+1}, s25, s21
    s_cselect_b32 s{DD+2}, s{DD+2}, {14*28672}
    s_mov_b32 s{DD+3}, 0x20000
    s_and_b32 s{DD+1}, s{DD+1}, 0xffff
    """)
    def dload(c):
        for ks in range(4):
            a.vmem(f"buffer_load_dwordx4 {vr(DF + (c*4 + ks)*4, 4)}, v{vL16}, s[{DD}:{DD+3}], s{sD} offen offset:{ks*1024}", f"d{c}")
        a(f"s_add_u32 s{sD}, s{sD}, 4096")
    dload(0)
    a("s_barrier")
    for c in range(1, DPF): dload(c)
    srd(a, WS, "s24", "s25", WS_USED)
    srd(a, OUT, "s28", "s29", 2048*896)
    sTT = 48
    a(f"""
    s_xor_b32 s{sTT}, s{sIDX}, s{sBR}
    v_lshlrev_b32 v{vT1}, 3, v{vT0}
    s_lshl_b32 s{sT0}, s{sRB}, 9
    s_lshl_b32 s{sT1}, s{sTT}, 8
    s_add_u32 s{sT0}, s{sT0}, s{sT1}
    s_add_u32 s{sT0}, s{sT0}, {GT}
    """)
    a.vmem(f"buffer_load_dwordx2 {vr(vG,2)}, v{vT1}, s[{WS}:{WS+3}], s{sT0} offen", "g")
    a(f"""
    v_lshrrev_b32 v{vT1}, 5, v{vLANE}
    v_bfe_u32 v{vT2}, v{vLANE}, 2, 2
    v_lshl_add_u32 v{vT3}, v{vT1}, 3, v{vT2}
    v_lshlrev_b32 v{vT3}, 7, v{vT3}
    v_lshrrev_b32 v{vT2}, 1, v{vT2}
    v_lshl_add_u32 v{vT3}, v{vT2}, 6, v{vT3}
    v_bfe_u32 v{vT2}, v{vLANE}, 4, 1
    v_lshl_add_u32 v{vT3}, v{vT2}, 5, v{vT3}
    v_and_b32 v{vT2}, 3, v{vLANE}
    v_lshl_add_u32 v{vT3}, v{vT2}, 3, v{vT3}
    s_lshl_b32 s{sT0}, s{sBR}, 13
    v_add_u32 v{vR[0][0]}, s{sT0}, v{vT3}
    v_xor_b32 v{vR[0][1]}, 64, v{vR[0][0]}
    v_add_u32 v{vR[1][0]}, 0x10000, v{vR[0][0]}
    v_add_u32 v{vR[1][1]}, 0x10000, v{vR[0][1]}
    s_lshl_b32 s{sT0}, s{sBR}, 2
    v_add_u32 v{vFA}, s{sT0}, v{vFA}
    v_and_b32 v{vT2}, 7, v{vT0}
    v_mul_u32_u24 v{vOO}, 57344, v{vT2}
    v_lshrrev_b32 v{vT2}, 3, v{vT0}
    v_mul_u32_u24 v{vT2}, 896, v{vT2}
    v_add_u32 v{vOO}, v{vOO}, v{vT2}
    v_lshl_add_u32 v{vOO}, v{vT1}, 4, v{vOO}
    s_lshr_b32 s{sT0}, s{sRB}, 3
    s_lshl_b32 s{sT0}, s{sT0}, 9
    s_and_b32 s{sT1}, s{sRB}, 7
    s_lshl_b32 s{sT1}, s{sT1}, 3
    s_add_u32 s{sT0}, s{sT0}, s{sT1}
    s_lshl_b32 s{sT1}, s{sTT}, 2
    s_add_u32 s{sT0}, s{sT0}, s{sT1}
    s_mul_i32 s{sT0}, s{sT0}, 896
    s_lshl_b32 s{sT1}, s{sCT}, 7
    s_add_u32 s{sT0}, s{sT0}, s{sT1}
    s_lshl_b32 s{sT1}, s{sIDX}, 6
    s_add_u32 s{sT3}, s{sT0}, s{sT1}
    v_add_u32 v{vXR}, {LDS_X}, v{vL16}
    s_cmp_eq_u32 s{sBR}, 1
    s_cbranch_scc1 L_k3_F
    """)
    snap = a.snapshot()
    def main(br):
        def treads(c):
            off = c * 16384; win = off // 65536; off %= 65536
            L = []
            for ks in range(4):
                for hf in range(2):
                    for rho in range(2):
                        L.append(f"ds_read_b64_tr_b16 {vr(TF + (c%2)*32 + ks*8 + hf*4 + rho*2, 2)}, v{vR[win][hf]} offset:{off + ks*2048 + rho*512}")
            return L
        def mf(c):
            L = []
            for ks in range(4):
                for hf in range(2):
                    d = vr(ACC + hf*16, 16)
                    cc = "0" if (c == 0 and ks == 0) else d
                    T = vr(TF + (c%2)*32 + ks*8 + hf*4, 4); D = vr(DF + (c*4 + ks)*4, 4)
                    L.append(f"v_mfma_f32_32x32x16_bf16 {d}, {T}, {D}, {cc}" if br == 0 else f"v_mfma_f32_32x32x16_bf16 {d}, {D}, {T}, {cc}")
            return L
        spin_ge(a, vFA, vFT, sFL, 0, 4)
        a(f"ds_read_b32 v{vFT}, v{vFA} offset:8")
        for l in treads(0): a(l)
        for c in range(7):
            if c + DPF < 7: dload(c + DPF)
            M = mf(c)
            if c == 6:
                a.comment("STAMP4")
                a.wait_vm(f"d{c}")
                for m in range(8):
                    a(f"s_waitcnt lgkmcnt({14 - 2*m})")
                    a(M[m])
                break
            lslow = a.newlabel("k3slow"); ljoin = a.newlabel("k3join")
            a(f"""
            s_waitcnt lgkmcnt(15)
            v_readfirstlane_b32 s{sFL}, v{vFT}
            """)
            a.wait_vm(f"d{c}")
            a(f"""
            s_cmp_ge_u32 s{sFL}, 4
            s_cbranch_scc0 {lslow}
            """)
            R = ([f"ds_read_b32 v{vFT}, v{vFA} offset:{8*(c+2)}"] if c + 2 < 7 else [f"ds_read_b32 v{vFT}, v{vFA}"]) + treads(c + 1)
            ri = 0
            for m in range(8):
                a(f"s_waitcnt lgkmcnt({min(15, 14 - 2*m + ri)})")
                a(M[m])
                for _ in range(3 if m < 6 else 0):
                    if ri < len(R): a(R[ri]); ri += 1
            while ri < len(R): a(R[ri]); ri += 1
            a(f"s_branch {ljoin}")
            a.label(lslow)
            for m in range(8):
                a(f"s_waitcnt lgkmcnt({14 - 2*m})")
                a(M[m])
            spin_ge(a, vFA, vFT, sFL, 8*(c+1), 4)
            for l in R: a(l)
            a.label(ljoin)
    def tail(w):
        br = w >> 1; idx = w & 1
        keep = idx if br == 0 else 1 - idx
        dest = {0: 3, 1: 2, 2: 0, 3: 1}[w]
        fo = 64 - 4*br
        a("s_nop 15")
        for r in range(4):
            a(f"ds_write_b128 v{vXR}, {vr(ACC + (1-keep)*16 + 4*r, 4)} offset:{dest*4096 + r*1024}")
        a(f"""
        s_waitcnt vmcnt(0) lgkmcnt(0)
        ds_write_b32 v{vFA}, v{vONE} offset:{fo + 4*dest}
        """)
        R = TF
        gown = vG + 1 if br == 0 else vG
        goth = vG if br == 0 else vG + 1
        for r in range(16): a(f"v_mul_f32 v{R+r}, v{ACC + keep*16 + r}, v{gown}")
        spin_ge(a, vFA, vFT, sFL, fo + 4*w, 1)
        for r in range(4):
            a(f"ds_read_b128 {vr(TF + 32 + 4*r, 4)}, v{vXR} offset:{w*4096 + r*1024}")
        PKD = TF + 16
        for qd in range(4):
            a(f"s_waitcnt lgkmcnt({3 - qd})")
            for r in range(4): a(f"v_fmac_f32 v{R+4*qd+r}, v{TF+32+4*qd+r}, v{goth}")
            a(f"v_cvt_pk_bf16_f32 v{PKD+2*qd}, v{R+4*qd}, v{R+4*qd+1}")
            a(f"v_cvt_pk_bf16_f32 v{PKD+2*qd+1}, v{R+4*qd+2}, v{R+4*qd+3}")
        a("s_nop 1")
        for h in range(2):
            a(f"v_permlane32_swap_b32 v{PKD+4*h}, v{PKD+4*h+2}")
            a(f"v_permlane32_swap_b32 v{PKD+4*h+1}, v{PKD+4*h+3}")
        for h in range(2):
            a(f"buffer_store_dwordx4 {vr(PKD+4*h,4)}, v{vOO}, s[{OUT}:{OUT+3}], s{sT3} offen offset:{h*32}")
        a("s_endpgm")
    main(0)
    a(f"s_cmp_eq_u32 s{sIDX}, 1")
    a("s_cbranch_scc1 L_k3_t1")
    tail(0)
    a.label("L_k3_t1"); tail(1)
    a.label("L_k3_F"); a.restore(snap)
    main(1)
    a(f"s_cmp_eq_u32 s{sIDX}, 1")
    a("s_cbranch_scc1 L_k3_t3")
    tail(2)
    a.label("L_k3_t3"); tail(3)
    a.label("L_k3_end")
    a("s_endpgm")
    return a.text(), kdesc(name, NV, 64), f"; @launch kernel={name} grid=(224,1,1) block=(512,1,1) lds={K3_LDS}"
```

```python
import sys
from k1 import gen_k1
from tables import gen_tables
HEADER = open("gated_mix__spectral_gfnet__mha_block__prompt.s.ref").read().split("; Override launch")[0]
def build(kernels, path):
    txt = HEADER
    for code, desc, launch in kernels: txt += launch + "\n"
    txt += '.amdgcn_target "amdgcn-amd-amdhsa--gfx950"\n.text\n'
    for code, desc, launch in kernels: txt += code
    txt += '.section .rodata,"a"\n'
    for code, desc, launch in kernels: txt += desc
    txt += gen_tables()
    open(path, "w").write(txt)
if __name__ == "__main__":
    ks = [gen_k1()]
    try:
        from k2 import gen_k2
        ks.append(gen_k2())
        from k3 import gen_k3
        ks.append(gen_k3())
    except ImportError as e:
        print("partial build:", e)
    import os, re
    SF = os.environ.get("STFLAG", "")
    if SF:
        for item in SF.split(","):
            ki, fl = item.split(":")
            ki = int(ki); c, d, l = ks[ki]
            c = re.sub(r"(buffer_store_\w+ [^\n]*)", lambda m: m.group(1) + " " + fl.replace("+", " "), c)
            ks[ki] = (c, d, l)
    if "--instr" in sys.argv:
        from instr import instrument
        info = [(12, 37), (4, 30), (4, 30)]
        ks = [(instrument(c, i, *info[i]), d.replace("next_free_sgpr 64", "next_free_sgpr 96"), l) for i, (c, d, l) in enumerate(ks)]
    if "--instr2" in sys.argv:
        from instr2 import instrument2
        ks = [(instrument2(c, i), d.replace("next_free_sgpr 64", "next_free_sgpr 96"), l) for i, (c, d, l) in enumerate(ks)]
    build(ks, sys.argv[1] if len(sys.argv) > 1 else "gated_mix__spectral_gfnet__mha_block__prompt.s")
```

```python
from asmlib import *
from layout import *
from tables import FFT_SIZE
import math, os, struct
EXP = os.environ.get('K1EXP', 'rotmix')

SLOT = 31744
NSLOT = 5
LDS_F = SLOT * NSLOT
K1_LDS = LDS_F + 64
QSCALE = (28 ** -0.5) * math.log2(math.e)
def f2u(f): return struct.unpack("<I", struct.pack("<f", f))[0]

def spin_ge(a, vaddr, vtmp, stmp, off, val, first_sleep=False):
    lsp = a.newlabel("sp"); lok = a.newlabel("ok")
    a.label(lsp)
    a(f"""
    ds_read_b32 v{vtmp}, v{vaddr} offset:{off}
    s_waitcnt lgkmcnt(0)
    v_readfirstlane_b32 s{stmp}, v{vtmp}
    s_cmp_ge_u32 s{stmp}, {val}
    s_cbranch_scc1 {lok}
    s_sleep 1
    s_branch {lsp}
    """)
    a.label(lok)
    a.lg = []

def gen_k1():
    a = Asm()
    name = "k1_kernel"
    a.lines.append(khead(name))
    X, BS, WS, WR, WI = 4, 8, 12, 16, 20
    sMT, sTY, sHG, sW, sMQ = 34, 35, 36, 37, 38
    sT0, sT1, sT2, sT3 = 40, 41, 42, 43
    sBROW, sASO, sBSO, sFL = 44, 45, 46, 47
    sMASK56 = 48
    sBCH, sB4, sOB, sSC, sCC, sTOK, sCOL = 50, 51, 52, 53, 54, 55, 56
    sAOFF = 64 - 4
    vLANE = 1
    vT0, vT1, vT2, vT3 = 2, 3, 4, 5
    vFA, vFT, vONE = 6, 7, 8
    a(f"""
    s_cmp_ge_u32 s2, 256
    s_cbranch_scc1 L_k1_end
    s_load_dwordx4 s[24:27], s[0:1], 0
    s_load_dwordx2 s[28:29], s[0:1], 16
    s_load_dwordx2 s[30:31], s[0:1], 32
    s_load_dwordx2 s[32:33], s[0:1], 72
    s_getpc_b64 s[58:59]
    s_add_u32 s58, s58, tbl_fd@rel32@lo+4
    s_addc_u32 s59, s59, tbl_fd@rel32@hi+12
    v_and_b32 v{vLANE}, 63, v0
    v_lshrrev_b32 v{vT0}, 6, v0
    s_and_b32 s{sT0}, s2, 7
    s_lshr_b32 s{sT1}, s2, 3
    v_readfirstlane_b32 s{sW}, v{vT0}
    s_lshr_b32 s{sHG}, s{sT0}, 1
    s_and_b32 s{sT2}, s{sT0}, 1
    s_lshl_b32 s{sT2}, s{sT2}, 3
    s_and_b32 s{sMT}, s{sT1}, 7
    s_add_u32 s{sMT}, s{sMT}, s{sT2}
    s_lshr_b32 s{sTY}, s{sT1}, 3
    s_and_b32 s{sMQ}, s{sW}, 3
    v_mov_b32 v{vFA}, {LDS_F}
    v_mov_b32 v{vONE}, 1
    s_cmp_ge_u32 s{sW}, 8
    s_cbranch_scc0 L_k1_compute
    """)
    vAO, vBO, vWKO, vWSO = 9, 10, 11, 12
    vWT = 16
    vZ = 40
    a(f"""
    s_lshr_b32 s{sTOK}, s{sMT}, 2
    s_lshl_b32 s{sTOK}, s{sTOK}, 9
    s_and_b32 s{sT2}, s{sMT}, 3
    s_lshl_b32 s{sT2}, s{sT2}, 4
    s_add_u32 s{sTOK}, s{sTOK}, s{sT2}
    s_mul_i32 s{sTOK}, s{sTOK}, 896
    v_lshrrev_b32 v{vT0}, 3, v{vLANE}
    v_and_b32 v{vT1}, 7, v{vLANE}
    v_xor_b32 v{vT1}, v{vT1}, v{vT0}
    v_lshlrev_b32 v{vT1}, 4, v{vT1}
    v_mul_u32_u24 v{vT2}, 57344, v{vT0}
    v_and_b32 v{vT3}, 3, v{vT0}
    v_mul_u32_u24 v{vT3}, 57344, v{vT3}
    v_lshrrev_b32 v{vT0}, 2, v{vT0}
    v_mul_u32_u24 v{vT0}, 896, v{vT0}
    v_add_u32 v{vT3}, v{vT3}, v{vT0}
    s_cmp_eq_u32 s{sTY}, 3
    s_cselect_b64 vcc, -1, 0
    s_nop 1
    v_cndmask_b32 v{vT2}, v{vT2}, v{vT3}, vcc
    v_add3_u32 v{vAO}, v{vT2}, v{vT1}, s{sTOK}
    v_mul_u32_u24 v{vT0}, 4682, v{vLANE}
    v_lshrrev_b32 v{vT0}, 16, v{vT0}
    v_mul_u32_u24 v{vT1}, 14, v{vT0}
    v_sub_u32 v{vT1}, v{vLANE}, v{vT1}
    v_lshlrev_b32 v{vT1}, 4, v{vT1}
    v_cmp_gt_u32 vcc, 56, v{vLANE}
    s_mov_b64 s[{sMASK56}:{sMASK56+1}], vcc
    s_mov_b32 s{sBROW}, 2688
    s_cmp_eq_u32 s{sTY}, 3
    s_cselect_b32 s{sBROW}, 896, s{sBROW}
    s_cselect_b32 s{sCOL}, 0, s{sTY}
    s_lshl_b32 s{sCOL}, s{sCOL}, 2
    s_add_u32 s{sCOL}, s{sCOL}, s{sHG}
    s_mul_i32 s{sCOL}, s{sCOL}, 224
    v_mul_lo_u32 v{vT0}, v{vT0}, s{sBROW}
    v_add3_u32 v{vBO}, v{vT0}, v{vT1}, s{sCOL}
    s_lshl_b32 s{sBCH}, s{sBROW}, 6
    s_lshl_b32 s{sB4}, s{sBROW}, 2
    s_lshl_b32 s{sCC}, s{sTY}, 1
    s_add_u32 s{sCC}, s{sCC}, s{sMT}
    {"s_mov_b32 s" + str(sCC) + ", 0" if "norot" in EXP else ""}
    {"s_and_b32 s" + str(sCC) + ", s2, 7" if "rotxcd" in EXP else ""}
    {"s_and_b32 s" + str(sCC) + ", s2, 7" if "rotmix" in EXP else ""}
    {"s_bfe_u32 s" + str(sT2) + ", s2, 0x10003" if "rotmix" in EXP else ""}
    {"s_mul_i32 s" + str(sT2) + ", s" + str(sT2) + ", 3" if "rotmix" in EXP else ""}
    {"s_add_u32 s" + str(sCC) + ", s" + str(sCC) + ", s" + str(sT2) if "rotmix" in EXP else ""}
    s_add_u32 s{sCC}, s{sCC}, s{sMQ}
    """)
    a("s_waitcnt lgkmcnt(0)")
    srd(a, X, "s24", "s25", 2048*896)
    a(f"""
    s_mov_b32 s{BS+2}, {448*2688}
    s_cmp_eq_u32 s{sTY}, 3
    s_cselect_b32 s{BS}, s58, s30
    s_cselect_b32 s{BS+1}, s59, s31
    s_cselect_b32 s{BS+2}, {448*896}, s{BS+2}
    s_mov_b32 s{BS+3}, 0x20000
    s_and_b32 s{BS+1}, s{BS+1}, 0xffff
    """)
    DEPTH = int(os.environ.get('K1DEPTH', '2'))
    sAO = [60, 61, 62, 63]
    sM0A, sM0B, sBW = 57, 39, 22
    a(f"s_mul_i32 s{sT2}, s{sMQ}, {4*896}")
    for ii in range(4):
        a(f"""
        s_mov_b32 s{sT3}, {ii*896}
        s_cmp_eq_u32 s{sTY}, 3
        s_cselect_b32 s{sT3}, {(256*(ii >> 1) + 2*(ii & 1))*896}, s{sT3}
        s_add_u32 s{sAO[ii]}, s{sT3}, s{sT2}
        """)
    a(f"""
    s_lshl_b32 s{sM0A}, s{sMQ}, 12
    s_mul_i32 s{sM0B}, s{sMQ}, 3840
    s_add_u32 s{sM0B}, s{sM0B}, 16384
    s_lshl_b32 s{sT2}, s{sB4}, 2
    s_mul_i32 s{sBW}, s{sT2}, s{sMQ}
    s_sub_u32 s{sCC}, s{sCC}, s{sMQ}
    s_mul_i32 s{sT3}, s{sCC}, 37
    s_lshr_b32 s{sT3}, s{sT3}, 8
    s_mul_i32 s{sT3}, s{sT3}, 7
    s_sub_u32 s{sT3}, s{sCC}, s{sT3}
    s_lshl_b32 s{sASO}, s{sT3}, 7
    s_mul_i32 s{sBSO}, s{sT3}, s{sBCH}
    """)
    def issue(c):
        slot = (c % NSLOT) * SLOT
        for ii in range(4):
            a(f"s_add_u32 m0, s{sM0A}, {slot + ii*1024}")
            a(f"s_add_u32 s{sT2}, s{sAO[ii]}, s{sASO}")
            a.vmem(f"buffer_load_dwordx4 v{vAO}, s[{X}:{X+3}], s{sT2} offen lds", f"c{c}")
        a(f"s_mov_b64 exec, s[{sMASK56}:{sMASK56+1}]")
        a(f"s_add_u32 s{sT2}, s{sBSO}, s{sBW}")
        for ii in range(4):
            a(f"s_add_u32 m0, s{sM0B}, {slot + (ii >> 1)*1920 + (ii & 1)*896}")
            if ii > 0: a(f"s_add_u32 s{sT2}, s{sT2}, s{sB4}")
            else: a("s_nop 0")
            a.vmem(f"buffer_load_dwordx4 v{vBO}, s[{BS}:{BS+3}], s{sT2} offen lds", f"c{c}")
        a(f"""
        s_mov_b64 exec, -1
        s_add_u32 s{sASO}, s{sASO}, 128
        s_add_u32 s{sBSO}, s{sBSO}, s{sBCH}
        s_cmp_eq_u32 s{sASO}, 896
        s_cselect_b32 s{sASO}, 0, s{sASO}
        s_cselect_b32 s{sBSO}, 0, s{sBSO}
        """)
    XA, XB, GWr, U = 44, 48, 52, 56
    sGT = 39
    def wt_issue():
        srd(a, WR, "s26", "s27", 2048*450)
        srd(a, WI, "s28", "s29", 2048*450)
        srd(a, WS, "s32", "s33", WS_USED)
        a(f"""
        s_and_b32 s{sT0}, s2, 7
        s_lshr_b32 s{sT1}, s2, 3
        s_lshl_b32 s{sT2}, s{sT0}, 5
        s_add_u32 s{sT2}, s{sT2}, s{sT1}
        s_lshl_b32 s{sT2}, s{sT2}, 3
        s_mul_i32 s{sT3}, s{sT2}, 450
        v_and_b32 v{vT0}, 255, v0
        v_lshlrev_b32 v{vWKO}, 1, v{vT0}
        v_lshlrev_b32 v{vWSO}, 5, v{vT0}
        s_mul_i32 s{sT2}, s{sT2}, {UBS // 8}
        s_add_u32 s{sT2}, s{sT2}, {WF}
        v_add_u32 v{vWSO}, s{sT2}, v{vWSO}
        v_mov_b32 v{vT1}, 0x7fffffff
        v_cmp_gt_u32 vcc, 225, v{vT0}
        s_nop 1
        v_cndmask_b32 v{vWSO}, v{vT1}, v{vWSO}, vcc
        """)
        for i in range(8):
            a.vmem(f"buffer_load_ushort v{vWT+i}, v{vWKO}, s[{WR}:{WR+3}], s{sT3} offen offset:{450*i}", "wt")
            a.vmem(f"buffer_load_ushort v{vWT+8+i}, v{vWKO}, s[{WI}:{WI+3}], s{sT3} offen offset:{450*i}", "wt")

    def gate_issue():
        a(f"""
        s_load_dwordx2 s[62:63], s[0:1], 48
        s_lshl_b32 s{sT0}, s2, 3
        s_lshl_b32 s{sT1}, s{sMQ}, 1
        s_add_u32 s{sGT}, s{sT0}, s{sT1}
        s_and_b32 s{sT1}, s{sGT}, 7
        s_lshl_b32 s{sT1}, s{sT1}, 6
        s_bfe_u32 s{sT2}, s{sGT}, 0x60003
        s_add_u32 s{sT1}, s{sT1}, s{sT2}
        s_lshr_b32 s{sT2}, s{sGT}, 9
        s_lshl_b32 s{sT2}, s{sT2}, 9
        s_add_u32 s{sT1}, s{sT1}, s{sT2}
        s_mul_i32 s{sT1}, s{sT1}, 896
        s_add_u32 s{sT2}, s{sT1}, {64*896}
        v_lshlrev_b32 v{vT2}, 4, v{vLANE}
        v_mov_b32 v{vT1}, 0x7fffffff
        v_cndmask_b32 v{vT1}, v{vT1}, v{vT2}, s[{sMASK56}:{sMASK56+1}]
        s_waitcnt lgkmcnt(0)
        """)
        srd(a, BS, "s62", "s63", 896)
        a.vmem(f"buffer_load_dwordx4 {vr(XA,4)}, v{vT1}, s[{X}:{X+3}], s{sT1} offen", "gt")
        a.vmem(f"buffer_load_dwordx4 {vr(XB,4)}, v{vT1}, s[{X}:{X+3}], s{sT2} offen", "gt")
        a.vmem(f"buffer_load_dwordx4 {vr(GWr,4)}, v{vT1}, s[{BS}:{BS+3}], 0 offen", "gt")
    def gate_finish():
        vA, vB = 13, 14
        for r in range(4):
            a(f"v_lshlrev_b32 v{U+2*r}, 16, v{GWr+r}")
            a(f"v_and_b32 v{U+2*r+1}, 0xffff0000, v{GWr+r}")
        for Xr, acc in ((XA, vT2), (XB, vT3)):
            for r in range(4):
                a(f"""
                v_lshlrev_b32 v{vA}, 16, v{Xr+r}
                v_and_b32 v{vB}, 0xffff0000, v{Xr+r}
                v_mul_f32 v{vA}, v{vA}, v{U+2*r}
                v_mul_f32 v{vB}, v{vB}, v{U+2*r+1}
                v_cvt_pk_bf16_f32 v{vA}, v{vA}, v{vB}
                v_lshlrev_b32 v{vB}, 16, v{vA}
                v_and_b32 v{vA}, 0xffff0000, v{vA}
                """)
                if r == 0: a(f"v_add_f32 v{acc}, v{vA}, v{vB}")
                else:
                    a(f"v_add_f32 v{acc}, v{acc}, v{vA}")
                    a(f"v_add_f32 v{acc}, v{acc}, v{vB}")
        for dpp in ("row_shr:1 bound_ctrl:0", "row_shr:2 bound_ctrl:0", "row_shr:4 bound_ctrl:0", "row_shr:8 bound_ctrl:0", "row_bcast:15 row_mask:0xa", "row_bcast:31 row_mask:0xc"):
            a("s_nop 1")
            a(f"v_add_f32_dpp v{vT2}, v{vT2}, v{vT2} {dpp}")
            a(f"v_add_f32_dpp v{vT3}, v{vT3}, v{vT3} {dpp}")
        a(f"""
        v_cvt_pk_bf16_f32 v{vA}, v{vT2}, v{vT3}
        v_lshlrev_b32 v{vT2}, 16, v{vA}
        v_and_b32 v{vT3}, 0xffff0000, v{vA}
        v_mul_f32 v{vT2}, {f2u(-1.4426950408889634)}, v{vT2}
        v_mul_f32 v{vT3}, {f2u(-1.4426950408889634)}, v{vT3}
        v_exp_f32 v{vT2}, v{vT2}
        v_exp_f32 v{vT3}, v{vT3}
        s_nop 0
        v_add_f32 v{vT2}, 1.0, v{vT2}
        v_add_f32 v{vT3}, 1.0, v{vT3}
        v_rcp_f32 v{vT2}, v{vT2}
        v_rcp_f32 v{vT3}, v{vT3}
        s_nop 0
        v_cvt_pk_bf16_f32 v{vA}, v{vT2}, v{vT3}
        v_lshlrev_b32 v{U}, 16, v{vA}
        v_and_b32 v{U+2}, 0xffff0000, v{vA}
        v_sub_f32 v{vT2}, 1.0, v{U}
        v_sub_f32 v{vT3}, 1.0, v{U+2}
        v_cvt_pk_bf16_f32 v{vA}, v{vT2}, v{vT3}
        v_lshlrev_b32 v{U+1}, 16, v{vA}
        v_and_b32 v{U+3}, 0xffff0000, v{vA}
        v_mov_b32 v{vT1}, 0x7fffffff
        v_cmp_eq_u32 vcc, 63, v{vLANE}
        s_lshl_b32 s{sGT}, s{sGT}, 3
        s_add_u32 s{sGT}, s{sGT}, {GT}
        v_cndmask_b32 v{vT1}, v{vT1}, 0, vcc
        buffer_store_dwordx4 {vr(U,4)}, v{vT1}, s[{WS}:{WS+3}], s{sGT} offen
        """)
    def prefetch_k2():
        a(f"""
        s_getpc_b64 s[60:61]
        s_add_u32 s60, s60, tbl_fft@rel32@lo+4
        s_addc_u32 s61, s61, tbl_fft@rel32@hi+12
        s_getpc_b64 s[62:63]
        s_add_u32 s62, s62, k2_kernel@rel32@lo+4
        s_addc_u32 s63, s63, k2_kernel@rel32@hi+12
        s_lshr_b32 s{sT0}, s2, 3
        s_lshl_b32 s{sT0}, s{sT0}, 2
        s_add_u32 s{sT0}, s{sT0}, s{sMQ}
        s_mul_i32 s{sT1}, s{sT0}, 576
        v_lshlrev_b32 v{vT1}, 7, v{vLANE}
        v_min_u32 v{vT2}, 640, v{vT1}
        """)
        srd(a, BS, "s60", "s61", FFT_SIZE)
        a.vmem(f"buffer_load_dword v15, v{vT2}, s[{BS}:{BS+3}], s{sT1} offen", "pf")
        srd(a, BS, "s62", "s63", "L_k2_end-k2_kernel")
        a(f"s_lshl_b32 s{sT1}, s{sMQ}, 13")
        a.vmem(f"buffer_load_dword v15, v{vT1}, s[{BS}:{BS+3}], s{sT1} offen", "pf")
    issue(0)
    a("s_barrier")
    for c in range(1, DEPTH): issue(c)
    for c in range(7):
        a.wait_vm(f"c{c}")
        a(f"""
        s_mov_b64 exec, 1
        ds_add_u32 v{vFA}, v{vONE} offset:{4 + 4*c}
        s_mov_b64 exec, -1
        """)
        if c == 0: a.comment("STAMP2")
        if c == 3: a.comment("STAMP3")
        if c == 6: a.comment("STAMP4")
        n = c + DEPTH
        if n < 7:
            if n >= NSLOT: spin_ge(a, vFA, vFT, sFL, 36 + 4*(n - NSLOT), 8)
            issue(n)
            if n == 6:
                wt_issue(); gate_issue()
                if 'nowt' in EXP: a(f'v_mov_b32 v{vWSO}, 0x7fffffff')
                if 'nopf' not in EXP: prefetch_k2()
    a(f"""
    s_cmp_eq_u32 s{sTY}, 3
    s_cbranch_scc1 L_k1_paddone
    s_cmp_eq_u32 s{sTY}, 2
    s_cbranch_scc1 L_k1_padv
    """)
    a(f"""
    v_lshrrev_b32 v{vT2}, 7, v{vT0}
    s_lshl_b32 s{sT3}, s{sHG}, 2
    v_add_u32 v{vT2}, s{sT3}, v{vT2}
    v_lshlrev_b32 v{vT2}, 6, v{vT2}
    v_bfe_u32 v{vT3}, v{vT0}, 5, 2
    s_lshl_b32 s{sT3}, s{sMT}, 2
    v_add3_u32 v{vT2}, v{vT2}, v{vT3}, s{sT3}
    s_add_u32 s{sT3}, s{sTY}, 11
    v_lshlrev_b32 v{vT2}, s{sT3}, v{vT2}
    v_and_b32 v{vT3}, 31, v{vT0}
    v_lshl_add_u32 v{vT2}, v{vT3}, 4, v{vT2}
    s_mul_i32 s{sT3}, s{sTY}, {KV}
    s_add_u32 s{sT3}, s{sT3}, {1024+512+8}
    s_lshl_b32 s{sT2}, 0x40000, s{sTY}
    s_add_u32 s{sT2}, s{sT2}, s{sT3}
    v_mov_b32 v{vZ}, 0
    v_mov_b32 v{vZ+1}, 0
    buffer_store_dwordx2 v[{vZ}:{vZ+1}], v{vT2}, s[{WS}:{WS+3}], s{sT3} offen
    buffer_store_dwordx2 v[{vZ}:{vZ+1}], v{vT2}, s[{WS}:{WS+3}], s{sT2} offen
    s_branch L_k1_paddone
    L_k1_padv:
    {"s_cmp_eq_u32 s" + str(sMQ) + ", 0" if "novz" in EXP else ""}
    {"s_cbranch_scc0 L_k1_paddone" if "novz" in EXP else ""}
    v_lshrrev_b32 v{vT2}, 4, v{vLANE}
    s_lshl_b32 s{sT3}, s{sHG}, 2
    v_add_u32 v{vT2}, s{sT3}, v{vT2}
    v_lshlrev_b32 v{vT2}, 6, v{vT2}
    v_bfe_u32 v{vT3}, v{vLANE}, 2, 2
    s_lshl_b32 s{sT3}, s{sMT}, 2
    v_add3_u32 v{vT2}, v{vT2}, v{vT3}, s{sT3}
    v_lshlrev_b32 v{vT2}, 12, v{vT2}
    v_and_b32 v{vT3}, 3, v{vLANE}
    v_lshl_add_u32 v{vT2}, v{vT3}, 9, v{vT2}
    s_cmp_eq_u32 s{sMQ}, 0
    s_cselect_b32 s{sT3}, 0x3f803f80, 0
    v_mov_b32 v{vZ}, s{sT3}
    v_mov_b32 v{vZ+1}, s{sT3}
    v_mov_b32 v{vZ+2}, s{sT3}
    v_mov_b32 v{vZ+3}, s{sT3}
    s_lshl_b32 s{sT3}, s{sMQ}, 4
    s_add_u32 s{sT3}, s{sT3}, {KV + 2048 + 28*16}
    buffer_store_dwordx4 v[{vZ}:{vZ+3}], v{vT2}, s[{WS}:{WS+3}], s{sT3} offen
    L_k1_paddone:
    s_waitcnt vmcnt(0)
    """)
    for i in range(8):
        a(f"v_lshl_or_b32 v{vWT+i}, v{vWT+8+i}, 16, v{vWT+i}")
    a(f"""
    buffer_store_dwordx4 v[{vWT}:{vWT+3}], v{vWSO}, s[{WS}:{WS+3}], 0 offen
    buffer_store_dwordx4 v[{vWT+4}:{vWT+7}], v{vWSO}, s[{WS}:{WS+3}], 0 offen offset:16
    """)
    gate_finish()
    if "wbl2" in EXP:
        a(f"""
        s_cmp_eq_u32 s{sMQ}, 0
        s_cbranch_scc0 L_k1_nowb
        s_waitcnt vmcnt(0)
        s_sleep {os.environ.get("WBSLEEP", "8")}
        buffer_wbl2 sc1
        L_k1_nowb:
        """)
    a("s_endpgm")

    a.label("L_k1_compute")
    vLA = [[9, 10], [11, 12], [13, 14]]
    vLB = [15, 16, 17]
    vPK = 18
    vEO = 20
    ACC, AF, BF = 32, 64, 80
    NV = 112
    a(f"""
    v_and_b32 v{vT0}, 15, v{vLANE}
    v_lshl_add_u32 v{vT1}, v{vT0}, 2, v{vFA}
    v_cmp_eq_u32 vcc, 8, v{vT0}
    v_mov_b32 v{vT2}, 0
    v_mov_b32 v{vT3}, 4
    v_cndmask_b32 v{vT2}, v{vT2}, v{vT3}, vcc
    ds_write_b32 v{vT1}, v{vT2}
    v_lshrrev_b32 v{vT1}, 4, v{vLANE}
    v_and_b32 v{vT2}, 7, v{vT0}
    v_xor_b32 v{vT2}, v{vT2}, v{vT1}
    v_lshlrev_b32 v{vT2}, 4, v{vT2}
    v_lshl_add_u32 v{vT2}, v{vT0}, 7, v{vT2}
    s_lshl_b32 s{sT3}, s{sMQ}, 12
    v_add_u32 v{vLA[0][0]}, s{sT3}, v{vT2}
    v_xor_b32 v{vLA[0][1]}, 64, v{vLA[0][0]}
    v_add_u32 v{vLA[1][0]}, {2*SLOT}, v{vLA[0][0]}
    v_add_u32 v{vLA[1][1]}, {2*SLOT}, v{vLA[0][1]}
    v_add_u32 v{vLA[2][0]}, {4*SLOT}, v{vLA[0][0]}
    v_add_u32 v{vLA[2][1]}, {4*SLOT}, v{vLA[0][1]}
    v_mul_u32_u24 v{vT2}, 1920, v{vT1}
    v_lshrrev_b32 v{vT3}, 2, v{vT0}
    v_mul_u32_u24 v{vT3}, 224, v{vT3}
    v_add_u32 v{vT2}, v{vT2}, v{vT3}
    v_and_b32 v{vT3}, 3, v{vLANE}
    v_lshl_add_u32 v{vLB[0]}, v{vT3}, 3, v{vT2}
    v_add_u32 v{vLB[1]}, {2*SLOT}, v{vLB[0]}
    v_add_u32 v{vLB[2]}, {4*SLOT}, v{vLB[0]}
    s_waitcnt lgkmcnt(0)
    """)
    a("s_barrier")
    if "touch" in EXP:
        TP0 = int(os.environ.get("K1TP0", "2"))
        a(f"""
        s_cmp_ge_u32 s{sW}, 2
        s_cbranch_scc1 L_k1_tdone
        s_and_b32 s{sCC}, s2, 7
        s_cmp_eq_u32 s{sCC}, 7
        s_cselect_b32 s{sCC}, 0, s{sCC}
        v_lshrrev_b32 v{vT2}, 5, v{vLANE}
        v_add_u32 v{vT2}, s{sCC}, v{vT2}
        s_cmp_eq_u32 s{sW}, 1
        s_cbranch_scc1 L_k1_tw
        """)
        srd(a, X, "s24", "s25", 2048*896)
        a(f"""
        s_lshr_b32 s{sT0}, s{sMT}, 2
        s_lshl_b32 s{sT0}, s{sT0}, 9
        s_and_b32 s{sT1}, s{sMT}, 3
        s_lshl_b32 s{sT1}, s{sT1}, 4
        s_add_u32 s{sT0}, s{sT0}, s{sT1}
        s_lshl_b32 s{sT1}, s{sTY}, 7
        s_add_u32 s{sT0}, s{sT0}, s{sT1}
        s_mul_i32 s{sT0}, s{sT0}, 896
        v_bfe_u32 v{vT3}, v{vLANE}, 4, 1
        v_lshlrev_b32 v{vT3}, 6, v{vT3}
        v_add_u32 v{vT3}, v{vT3}, v{vT0}
        v_mul_u32_u24 v{vT3}, 896, v{vT3}
        """)
        for n in range(3):
            a(f"""
            v_add_u32 v{vPK}, {TP0 + 2*n}, v{vT2}
            v_subrev_u32 v19, 7, v{vPK}
            v_min_u32 v{vPK}, v{vPK}, v19
            v_lshl_add_u32 v{vPK}, v{vPK}, 7, v{vT3}
            buffer_load_dword v27, v{vPK}, s[{X}:{X+3}], s{sT0} offen
            """)
        a(f"""
        s_branch L_k1_tdone
        L_k1_tw:
        s_mov_b32 s{BS+2}, {448*2688}
        s_mov_b32 s{sBROW}, 2688
        s_cmp_eq_u32 s{sTY}, 3
        s_cselect_b32 s{BS}, s58, s30
        s_cselect_b32 s{BS+1}, s59, s31
        s_cselect_b32 s{BS+2}, {448*896}, s{BS+2}
        s_mov_b32 s{BS+3}, 0x20000
        s_cselect_b32 s{sBROW}, 896, s{sBROW}
        s_cselect_b32 s{sCOL}, 0, s{sTY}
        s_and_b32 s{BS+1}, s{BS+1}, 0xffff
        s_lshl_b32 s{sCOL}, s{sCOL}, 2
        s_add_u32 s{sCOL}, s{sCOL}, s{sHG}
        s_mul_i32 s{sCOL}, s{sCOL}, 224
        s_and_b32 s{sT0}, s{sMT}, 7
        s_lshl_b32 s{sT0}, s{sT0}, 3
        s_mul_i32 s{sT0}, s{sT0}, s{sBROW}
        s_add_u32 s{sT0}, s{sT0}, s{sCOL}
        v_and_b32 v{vT3}, 7, v{vLANE}
        v_bfe_u32 v26, v{vLANE}, 3, 2
        v_min_u32 v26, 2, v26
        v_mul_u32_u24 v26, 108, v26
        """)
        for n in range(3):
            a(f"""
            v_add_u32 v{vPK}, {TP0 + 2*n}, v{vT2}
            v_subrev_u32 v19, 7, v{vPK}
            v_min_u32 v{vPK}, v{vPK}, v19
            v_lshl_add_u32 v{vPK}, v{vPK}, 6, v{vT3}
            v_mul_lo_u32 v{vPK}, v{vPK}, s{sBROW}
            v_add_u32 v{vPK}, v{vPK}, v26
            buffer_load_dword v27, v{vPK}, s[{BS}:{BS+3}], s{sT0} offen offset:4
            """)
        a.label("L_k1_tdone")

    srd(a, WS, "s32", "s33", WS_USED)
    for j in range(4): a(f"v_mov_b32 v{vEO+j}, 0")
    sNH = 48
    a(f"s_lshr_b32 s{sNH}, s{sW}, 2")
    a(f"s_lshl_b32 s{sT3}, s{sNH}, 7")
    a(f"v_add_u32 v15, s{sT3}, v15")
    a(f"s_mov_b32 s{sSC}, 1.0")
    def eo_T0(nh):
        NT = 4 - nh
        lq = a.newlabel("k1dfto"); lend = a.newlabel("k1eod")
        a(f"""
        s_cmp_eq_u32 s{sTY}, 3
        s_cbranch_scc1 {lq}
        s_add_u32 s{sT2}, s{sTY}, 17
        """)
        for j in range(NT):
            a(f"""
            v_lshlrev_b32 v{vT2}, 2, v{vT1}
            v_add_u32 v{vT2}, {16*(j+4*nh)}, v{vT2}
            v_mul_u32_u24 v{vT3}, 2341, v{vT2}
            v_lshrrev_b32 v{vT3}, 16, v{vT3}
            v_mul_u32_u24 v{vPK}, 28, v{vT3}
            v_sub_u32 v{vT2}, v{vT2}, v{vPK}
            v_lshlrev_b32 v{vT3}, s{sT2}, v{vT3}
            v_lshrrev_b32 v{vPK}, 3, v{vT2}
            v_lshl_add_u32 v{vT3}, v{vPK}, 9, v{vT3}
            v_and_b32 v{vT2}, 4, v{vT2}
            v_lshl_add_u32 v{vT3}, v{vT2}, 1, v{vT3}
            v_lshl_add_u32 v{vEO+j}, v{vT0}, 4, v{vT3}
            """)
        a(f"""
        s_lshl_b32 s{sOB}, s{sHG}, 8
        s_lshl_b32 s{sT3}, s{sMT}, 2
        s_add_u32 s{sOB}, s{sOB}, s{sT3}
        s_add_u32 s{sOB}, s{sOB}, s{sMQ}
        s_add_u32 s{sT3}, s{sTY}, 11
        s_lshl_b32 s{sOB}, s{sOB}, s{sT3}
        s_mul_i32 s{sT3}, s{sTY}, {KV}
        s_add_u32 s{sOB}, s{sOB}, s{sT3}
        s_cmp_eq_u32 s{sTY}, 0
        s_cselect_b32 s{sSC}, {f2u(QSCALE)}, 1.0
        s_branch {lend}
        """)
        a.label(lq)
        a(f"""
        v_mul_u32_u24 v{vT2}, {2*X1S}, v{vT1}
        v_lshl_add_u32 v{vEO}, v{vT0}, 2, v{vT2}
        v_add_u32 v{vEO+1}, {X1S}, v{vEO}
        s_mul_i32 s{sOB}, s{sHG}, {56*X1S}
        s_bfe_u32 s{sT3}, s{sMT}, 0x10001
        s_lshl_b32 s{sT3}, s{sT3}, 12
        s_add_u32 s{sOB}, s{sOB}, s{sT3}
        s_lshr_b32 s{sT3}, s{sMT}, 2
        s_lshl_b32 s{sT3}, s{sT3}, 10
        s_add_u32 s{sOB}, s{sOB}, s{sT3}
        s_and_b32 s{sT3}, s{sMT}, 1
        s_lshl_b32 s{sT3}, s{sT3}, 8
        s_add_u32 s{sOB}, s{sOB}, s{sT3}
        s_lshl_b32 s{sT3}, s{sMQ}, 6
        s_add_u32 s{sOB}, s{sOB}, s{sT3}
        s_add_u32 s{sOB}, s{sOB}, {X1F + nh*4*8*X1S}
        """)
        a.label(lend)
    def eo_T1(nh):
        NT = 4 - nh
        a(f"""
        v_bfe_u32 v{vT1}, v{vLANE}, 4, 1
        v_lshlrev_b32 v{vT1}, 9, v{vT1}
        v_lshrrev_b32 v{vT2}, 5, v{vLANE}
        v_lshl_add_u32 v{vT1}, v{vT2}, 3, v{vT1}
        """)
        for j in range(NT):
            a(f"""
            v_add_u32 v{vT2}, {16*(j+4*nh)}, v{vT0}
            v_mul_u32_u24 v{vT3}, 2341, v{vT2}
            v_lshrrev_b32 v{vT3}, 16, v{vT3}
            v_mul_u32_u24 v{vPK}, 28, v{vT3}
            v_sub_u32 v{vT2}, v{vT2}, v{vPK}
            v_lshl_add_u32 v{vT3}, v{vT3}, 18, v{vT1}
            v_lshl_add_u32 v{vEO+j}, v{vT2}, 4, v{vT3}
            """)
        a(f"""
        s_lshl_b32 s{sOB}, s{sHG}, 8
        s_lshl_b32 s{sT3}, s{sMT}, 2
        s_add_u32 s{sOB}, s{sOB}, s{sT3}
        s_add_u32 s{sOB}, s{sOB}, s{sMQ}
        s_lshl_b32 s{sOB}, s{sOB}, 12
        s_add_u32 s{sOB}, s{sOB}, {KV + 2048}
        """)
    def mainloop(T, nh):
        NT = 4 - nh
        NB = 2*NT
        vA0, vA1, vB, vA0n, vBn, vFP = 11, 12, 13, 14, 16, 17
        sSL, sI = 57, 39
        def reads(tt, va, vb):
            buf = tt
            L = []
            for i in range(2):
                L.append(f"ds_read_b128 {vr(AF + buf*8 + i*4, 4)}, v{va} offset:{i*2048}")
            for j in range(NT):
                for rho in range(2):
                    L.append(f"ds_read_b64_tr_b16 {vr(BF + buf*16 + j*4 + rho*2, 2)}, v{vb} offset:{16384 + tt*7680 + rho*896 + j*32}")
            if "noread" in EXP: L = [f"ds_read_b32 v{AF + buf*8 + (k & 7)}, v{vFA}" for k in range(len(L))]
            return L
        def mfmas(buf):
            L = []
            for j in range(NT):
                for i in range(2):
                    d = vr(ACC + (i*4 + j)*4, 4)
                    xa = vr(AF + buf*8 + i*4, 4); wb = vr(BF + buf*16 + j*4, 4)
                    L.append(f"v_mfma_f32_16x16x32_bf16 {d}, {wb}, {xa}, {d}" if T == 0 else f"v_mfma_f32_16x16x32_bf16 {d}, {xa}, {wb}, {d}")
            return L
        def inter(M, R, tailops=0):
            ri = 0
            for j in range(NT):
                n = (NB - 2*(j + 1)) + tailops + ri
                a(f"s_waitcnt lgkmcnt({min(n, 15)})")
                a(M[2*j])
                for _ in range(2 if j < NT - 1 else 0):
                    if ri < len(R): a(R[ri]); ri += 1
                a(M[2*j + 1])
                for _ in range(2 if j < NT - 1 else 0):
                    if ri < len(R): a(R[ri]); ri += 1
            while ri < len(R): a(R[ri]); ri += 1
        for r in range(32): a(f"v_mov_b32 v{ACC+r}, 0")
        a(f"""
        v_mov_b32 v{vA1}, v10
        v_mov_b32 v{vB}, v15
        v_mov_b32 v{vFP}, v{vFA}
        s_mov_b32 s{sSL}, 0
        s_mov_b32 s{sI}, 0
        """)
        spin_ge(a, vFA, vFT, sFL, 4, 4)
        for l in reads(0, 9, 15): a(l)
        a(f"""
        s_mov_b64 exec, 1
        ds_add_u32 v{vFA}, v{vONE} offset:60
        s_mov_b64 exec, -1
        """)
        lloop = f"L_k1_loop{T}{nh}"; lslow = f"L_k1_slow{T}{nh}"; ljoin = f"L_k1_join{T}{nh}"; ldone = f"L_k1_done{T}{nh}"
        a(".p2align 6")
        a.label(lloop)
        a(f"""
        s_add_u32 s{sSL}, s{sSL}, {SLOT}
        s_cmp_eq_u32 s{sSL}, {NSLOT*SLOT}
        s_cselect_b32 s{sSL}, 0, s{sSL}
        v_add_u32 v{vA0n}, s{sSL}, v9
        v_add_u32 v{vBn}, s{sSL}, v15
        """)
        inter(mfmas(0), [f"ds_read_b32 v{vFT}, v{vFP} offset:8"] + reads(1, vA1, vB), 1)
        a(f"""
        s_waitcnt lgkmcnt({NB + 2})
        v_readfirstlane_b32 s{sFL}, v{vFT}
        v_add_u32 v{vA1}, s{sSL}, v10
        v_mov_b32 v{vB}, v{vBn}
        s_cmp_ge_u32 s{sFL}, 4
        s_cbranch_scc0 {lslow}
        """)
        inter(mfmas(1), reads(0, vA0n, vBn))
        a(f"""
        s_mov_b64 exec, 1
        ds_add_u32 v{vFP}, v{vONE} offset:36
        s_mov_b64 exec, -1
        """)
        a.label(ljoin)
        a(f"""
        v_add_u32 v{vFP}, 4, v{vFP}
        s_add_u32 s{sI}, s{sI}, 1
        s_cmp_lt_u32 s{sI}, 7
        s_cbranch_scc1 {lloop}
        s_branch {ldone}
        """)
        a.label(lslow)
        inter(mfmas(1), [])
        a(f"""
        s_mov_b64 exec, 1
        ds_add_u32 v{vFP}, v{vONE} offset:36
        s_mov_b64 exec, -1
        """)
        spin_ge(a, vFP, vFT, sFL, 8, 4)
        for l in reads(0, vA0n, vBn): a(l)
        a(f"""
        s_mov_b64 exec, 1
        ds_add_u32 v{vFA}, v{vONE} offset:60
        s_mov_b64 exec, -1
        s_branch {ljoin}
        """)
        a.label(ldone)
        a("s_nop 7")
    def epi_T0(nh):
        NT = 4 - nh
        lq = a.newlabel("k1dft")
        a(f"""
        s_cmp_eq_u32 s{sTY}, 3
        s_cbranch_scc1 {lq}
        """)
        for j in range(NT):
            for i in range(2):
                d = ACC + (i*4 + j)*4
                for r in range(4):
                    a(f"v_mul_f32 v{d+r}, s{sSC}, v{d+r}")
                a(f"v_cvt_pk_bf16_f32 v{d}, v{d}, v{d+1}")
                a(f"v_cvt_pk_bf16_f32 v{d+1}, v{d+2}, v{d+3}")
                a(f"buffer_store_dwordx2 v[{d}:{d+1}], v{vEO+j}, s[{WS}:{WS+3}], s{sOB} offen offset:{i*256}")
        a("s_endpgm")
        a.label(lq)
        for j in range(NT):
            for i in range(2):
                d = ACC + (i*4 + j)*4
                a(f"v_cvt_pk_bf16_f32 v{d}, v{d}, v{d+1}")
                a(f"v_cvt_pk_bf16_f32 v{d+1}, v{d+2}, v{d+3}")
                a(f"buffer_store_dword v{d}, v{vEO}, s[{WS}:{WS+3}], s{sOB} offen offset:{i*512}")
                a(f"buffer_store_dword v{d+1}, v{vEO+1}, s[{WS}:{WS+3}], s{sOB} offen offset:{i*512}")
            a(f"s_add_u32 s{sOB}, s{sOB}, {8*X1S}")
        a("s_endpgm")
    def epi_T1(nh):
        NT = 4 - nh
        for j in range(NT):
            for i in range(2):
                d = ACC + (i*4 + j)*4
                a(f"v_cvt_pk_bf16_f32 v{d}, v{d}, v{d+1}")
                a(f"v_cvt_pk_bf16_f32 v{d+1}, v{d+2}, v{d+3}")
                a(f"buffer_store_dwordx2 v[{d}:{d+1}], v{vEO+j}, s[{WS}:{WS+3}], s{sOB} offen offset:{i*1024}")
        a("s_endpgm")
    a(f"""
    s_cmp_eq_u32 s{sTY}, 2
    s_cbranch_scc1 L_k1_v
    s_cmp_eq_u32 s{sNH}, 1
    s_cbranch_scc1 L_k1_t01
    """)
    eo_T0(0); mainloop(0, 0); epi_T0(0)
    a.label("L_k1_t01")
    eo_T0(1); mainloop(0, 1); epi_T0(1)
    a.label("L_k1_v")
    a(f"""
    s_cmp_eq_u32 s{sNH}, 1
    s_cbranch_scc1 L_k1_t11
    """)
    eo_T1(0); mainloop(1, 0); epi_T1(0)
    a.label("L_k1_t11")
    eo_T1(1); mainloop(1, 1); epi_T1(1)
    a.label("L_k1_end")
    a("s_endpgm")
    return a.text(), kdesc(name, NV, 64), f"; @launch kernel={name} grid=(256,1,1) block=(768,1,1) lds={K1_LDS}"
```

```python
from asmlib import *
from layout import *
from tables import FFT_A1, FFT_A2, FFT_TW1, FFT_TW2, FFT_SIZE
import struct, os
EXP = os.environ.get('K2EXP', 'oldmap,late45')
def f2u(f): return struct.unpack("<I", struct.pack("<f", f))[0]

CH = 16384
NSLOT = 8
NCH = 16
LDS_T = NSLOT * CH
LDS_Y = LDS_T + 32 * 272
LDS_R = LDS_Y + 32 * 272
LDS_C = LDS_R + 64 * 144
K2_LDS = LDS_C + 128

def gen_k2():
    a = Asm()
    name = "k2_kernel"
    a.lines.append(khead(name))
    WS, TB, XS, GW = 4, 8, 12, 16
    sW, sH, sQB, sT0, sT1, sT2, sT3 = 30, 31, 32, 33, 34, 35, 36
    sKVO, sM0, sRT, sKH = 37, 38, 39, 40
    sCNT = 41
    vLANE = 1
    vT0, vT1, vT2, vT3 = 2, 3, 4, 5
    MAP = f"""    s_and_b32 s{sT0}, s2, 7
    s_lshl_b32 s{sT0}, s{sT0}, 1
    v_readfirstlane_b32 s{sW}, v{vT0}
    s_bfe_u32 s{sT1}, s2, 0x10003
    s_add_u32 s{sH}, s{sT0}, s{sT1}
    s_lshr_b32 s{sQB}, s2, 4
""" if 'oldmap' in EXP else f"""    s_bfe_u32 s{sT0}, s2, 0x20001
    s_lshl_b32 s{sT0}, s{sT0}, 2
    v_readfirstlane_b32 s{sW}, v{vT0}
    s_bfe_u32 s{sT1}, s2, 0x20003
    s_add_u32 s{sH}, s{sT0}, s{sT1}
    s_and_b32 s{sT0}, s2, 1
    s_lshl_b32 s{sT0}, s{sT0}, 3
    s_lshr_b32 s{sQB}, s2, 5
    s_add_u32 s{sQB}, s{sQB}, s{sT0}
"""
    a(f"""
    s_cmp_ge_u32 s2, 256
    s_cbranch_scc1 L_k2_end
    s_load_dwordx2 s[24:25], s[0:1], 72
    s_load_dwordx2 s[26:27], s[0:1], 0
    s_load_dwordx2 s[28:29], s[0:1], 48
    s_getpc_b64 s[20:21]
    s_add_u32 s20, s20, tbl_fft@rel32@lo+4
    s_addc_u32 s21, s21, tbl_fft@rel32@hi+12
    v_and_b32 v{vLANE}, 63, v0
    v_lshrrev_b32 v{vT0}, 6, v0
{MAP}
    s_waitcnt lgkmcnt(0)
    """)
    srd(a, WS, "s24", "s25", WS_USED)
    srd(a, TB, "s20", "s21", FFT_SIZE)
    srd(a, XS, "s26", "s27", 2048*896)
    srd(a, GW, "s28", "s29", 896)
    a(f"""
    s_cmp_ge_u32 s{sW}, 8
    s_cbranch_scc1 L_k2_fft
    """)
    vDMA, vK, vV, vCA = 6, 7, 8, 9
    vONE, vFL = 14, 15
    sKVB, sFL, sC, sSLOT, sQP = 44, 45, 46, 47, 48
    Q, KF, VF, S, P, O = 16, 32, 48, 64, 96, 112
    QLDS = 7 * CH
    a(f"""
    v_lshlrev_b32 v{vT0}, 4, v{vLANE}
    s_lshl_b32 s{sM0}, s{sW}, 11
    v_add_u32 v{vDMA}, s{sM0}, v{vT0}
    s_lshl_b32 s{sKVB}, s{sH}, 18
    s_add_u32 s{sKVB}, s{sKVB}, {KV}
    s_and_b32 s{sKVO}, s2, {0 if 'oldmap' in EXP else 1}
    s_lshl_b32 s{sKVO}, s{sKVO}, 17
    s_mov_b32 s{sSLOT}, s{sM0}
    """)
    def dma(tag):
        a(f"s_mov_b32 m0, s{sSLOT}")
        a(f"s_add_u32 s{sT3}, s{sKVB}, s{sKVO}")
        a.vmem(f"buffer_load_dwordx4 v{vDMA}, s[{WS}:{WS+3}], s{sT3} offen lds", tag)
        a.vmem(f"buffer_load_dwordx4 v{vDMA}, s[{WS}:{WS+3}], s{sT3} offen offset:1024 lds", tag)
        a(f"s_add_u32 s{sKVO}, s{sKVO}, {CH}")
        a(f"s_and_b32 s{sKVO}, s{sKVO}, 0x3ffff")
        a(f"s_add_u32 s{sSLOT}, s{sSLOT}, {CH}")
        a(f"s_and_b32 s{sSLOT}, s{sSLOT}, {NSLOT*CH - 1}")
    dma("c0")
    a(f"""
    s_lshl_b32 s{sT1}, s{sH}, 6
    s_lshl_b32 s{sT0}, s{sQB}, 2
    s_add_u32 s{sT1}, s{sT1}, s{sT0}
    s_lshl_b32 s{sT1}, s{sT1}, 11
    s_lshl_b32 s{sT2}, s{sW}, 10
    s_add_u32 s{sT1}, s{sT1}, s{sT2}
    s_add_u32 m0, s{sT2}, {QLDS}
    s_and_b32 s{sQP}, s{sW}, 1
    """)
    a.vmem(f"buffer_load_dwordx4 v{vT0}, s[{WS}:{WS+3}], s{sT1} offen lds", "q")
    dma("c1")
    a(f"""
    s_add_u32 s{sKVO}, s{sKVO}, {4*CH}
    s_and_b32 s{sKVO}, s{sKVO}, 0x3ffff
    s_add_u32 s{sSLOT}, s{sSLOT}, {4*CH}
    """)
    a(f"""
    s_lshr_b32 s{sKH}, s{sW}, 1
    s_add_u32 s{sKH}, s{sKH}, 2
    s_and_b32 s{sKH}, s{sKH}, 3
    s_lshl_b32 s{sT1}, s{sKH}, 12
    v_add_u32 v{vV}, s{sT1}, v{vT0}
    v_add_u32 v{vK}, {2*CH}, v{vV}
    v_mov_b32 v{vCA}, {LDS_C}
    v_mov_b32 v{vONE}, 1
    v_and_b32 v{vT2}, 31, v{vLANE}
    v_lshlrev_b32 v{vT1}, 2, v{vT2}
    v_add_u32 v{vT1}, {LDS_C}, v{vT1}
    v_add_u32 v{vT2}, -2, v{vT2}
    v_cmp_gt_u32 vcc, 6, v{vT2}
    v_mov_b32 v{vT2}, 0
    v_mov_b32 v{vFL}, 8
    v_cndmask_b32 v{vT2}, v{vT2}, v{vFL}, vcc
    ds_write_b32 v{vT1}, v{vT2}
    s_waitcnt lgkmcnt(0)
    s_barrier
    s_lshl_b32 s{sT1}, s{sQP}, 12
    s_add_u32 s{sT1}, s{sT1}, {QLDS}
    v_add_u32 v{vT1}, s{sT1}, v{vT0}
    s_lshl_b32 s{sRT}, s{sQB}, 2
    s_lshl_b32 s{sT1}, s{sQP}, 1
    s_add_u32 s{sRT}, s{sRT}, s{sT1}
    """)
    for r in range(32): a(f"v_mov_b32 v{O+r}, 0")
    for r in range(8): a(f"v_mov_b32 v{P+8+r}, 0")
    for r in range(8): a(f"v_mov_b32 v{VF+8+r}, 0")
    def rd2(dst, base, off):
        for f in range(2):
            a(f"ds_read_b128 {vr(dst + f*4, 4)}, v{base} offset:{off + f*1024}")
    def qk(sb, kb, qb, f):
        d = vr(S + sb*16, 16)
        c = "0" if f == 0 else d
        return f"v_mfma_f32_32x32x16_bf16 {d}, {vr(KF + kb*8 + f*4, 4)}, {vr(Q + qb*8 + f*4, 4)}, {c}"
    def pv(ob, vb, pb, f):
        d = vr(O + ob*16, 16)
        return f"v_mfma_f32_32x32x16_bf16 {d}, {vr(VF + vb*8 + f*4, 4)}, {vr(P + pb*8 + f*4, 4)}, {d}"
    a.wait_vm(["c0", "q", "c1"])
    a(f"""
    s_mov_b64 exec, 1
    ds_add_u32 v{vCA}, v{vONE} offset:64
    s_mov_b64 exec, -1
    L_k2_b0:
    ds_read_b32 v{vFL}, v{vCA} offset:64
    s_waitcnt lgkmcnt(0)
    v_readfirstlane_b32 s{sFL}, v{vFL}
    s_cmp_ge_u32 s{sFL}, 8
    s_cbranch_scc0 L_k2_b0
    """)
    rd2(KF, vV, 0)
    rd2(Q, vT1, 0); rd2(Q + 8, vT1, 2048)
    a(f"""
    s_mov_b32 s{sC}, 0
    s_waitcnt lgkmcnt(0)
    """)
    a(qk(0, 0, 0, 0)); a(qk(0, 0, 0, 1))
    if "yprio" in EXP:
        a(f"""
        s_cmp_ge_u32 s{sW}, 4
        s_cbranch_scc0 L_k2_np
        s_setprio 1
        L_k2_np:
        """)
    if "aprio" in EXP: a("s_setprio 1")
    a("s_nop 7")
    a.vm = []; a.lg = []
    def trip(kind):
        lab = f"L_k2_loop{kind}"
        a(".p2align 6")
        a.label(lab)
        if "trips" in EXP and kind == 0:
            for T, st in ((0, 0), (1, 2), (2, 3), (4, 4)):
                l = a.newlabel("st")
                a(f"s_cmp_lg_u32 s{sC}, {T}")
                a(f"s_cbranch_scc1 {l}")
                a.label(l)
        for it in range(4):
            par = it % 2
            if it == 0:
                rd2(KF + 8, vV, CH); rd2(VF, vV, 2048)
            elif it == 2:
                a(f"""
                s_cmp_ge_u32 s{sFL}, 16
                s_cbranch_scc0 L_k2_spin{kind}
                L_k2_flagok{kind}:
                """)
                rd2(KF, vK, 0); rd2(VF + 8, vV, CH + 2048)
            elif it == 1:
                a("s_waitcnt lgkmcnt(1)")
            else:
                a("s_waitcnt lgkmcnt(0)")
            s0 = S + par*16; p0 = P + par*8
            e = [f"v_exp_f32 v{s0+k}, v{s0+k}" for k in range(16)]
            cv = [f"v_cvt_pk_bf16_f32 v{p0+k}, v{s0+2*k}, v{s0+2*k+1}" for k in range(8)]
            kb = [0, 1, 1, 0][it]; vb = [1, 0, 0, 1][it]
            m = [qk(1-par, kb, 1-par, 0), pv(1-par, vb, 1-par, 0), qk(1-par, kb, 1-par, 1), pv(1-par, vb, 1-par, 1)]
            for g in range(4):
                if "ord2" in EXP:
                    a(m[g]); a(e[4*g]); a(e[4*g+1]); a(e[4*g+2]); a(cv[2*g]); a(e[4*g+3])
                    if g > 0: a(cv[2*g-1])
                    if g == 3: a("s_nop 0"); a(cv[7])
                elif "ord3" in EXP:
                    a(e[4*g]); a(e[4*g+1]); a(m[g]); a(e[4*g+2]); a(cv[2*g]); a(e[4*g+3])
                    if g > 0: a(cv[2*g-1])
                    if g == 3: a("s_nop 0"); a(cv[7])
                else:
                    a(e[4*g])
                    a(m[g])
                    a(e[4*g+1]); a(e[4*g+2]); a(e[4*g+3])
                    a(cv[2*g]); a(cv[2*g+1])
                if it == 0 and g == 3:
                    a(f"""
                    s_waitcnt vmcnt({4 if kind == 0 else 0})
                    s_mov_b64 exec, 1
                    ds_add_u32 v{vCA}, v{vONE}
                    s_mov_b64 exec, -1
                    """)
                if it == 1 and g == 1:
                    a(f"ds_read_b32 v{vFL}, v{vCA}")
                if it == 1 and g == 3:
                    a(f"""
                    s_waitcnt lgkmcnt(0)
                    v_readfirstlane_b32 s{sFL}, v{vFL}
                    """)
                if kind == 0 and it >= 2 and g == 1:
                    dma("x")
                if it == 3 and g == 2:
                    a(f"""
                    v_mov_b32 v{vV}, v{vK}
                    v_add_u32 v{vK}, {2*CH}, v{vK}
                    v_and_b32 v{vK}, {NSLOT*CH - 1}, v{vK}
                    v_add_u32 v{vCA}, 4, v{vCA}
                    s_add_u32 s{sC}, s{sC}, 1
                    """)
        a(f"""
        s_cmp_lt_u32 s{sC}, {5 if kind == 0 else 8}
        s_cbranch_scc1 {lab}
        """)
    def spin(kind):
        a(f"""
        L_k2_spin{kind}:
        s_sleep 1
        ds_read_b32 v{vFL}, v{vCA}
        s_waitcnt lgkmcnt(0)
        v_readfirstlane_b32 s{sFL}, v{vFL}
        s_cmp_ge_u32 s{sFL}, 16
        s_cbranch_scc0 L_k2_spin{kind}
        s_branch L_k2_flagok{kind}
        """)
    trip(0)
    trip(1)
    a("s_branch L_k2_loopdone")
    spin(0); spin(1)
    a.label("L_k2_loopdone")
    a.vm = []; a.lg = []
    a(pv(1, 1, 1, 0)); a(pv(1, 1, 1, 1))
    a(f"""
    s_mul_i32 s{sT0}, s{sQP}, {6*4096}
    v_lshlrev_b32 v{vT0}, 4, v{vLANE}
    v_add_u32 v{vT0}, s{sT0}, v{vT0}
    s_lshl_b32 s{sT0}, s{sQP}, 3
    s_add_u32 s{sT0}, s{sT0}, {LDS_C + 80}
    v_mov_b32 v{vCA}, s{sT0}
    s_cmp_ge_u32 s{sKH}, 2
    s_cbranch_scc1 L_k2_send2
    s_cmp_eq_u32 s{sKH}, 1
    s_cbranch_scc1 L_k2_own1
    """)
    def send(X, base, off):
        for r in range(4):
            a(f"ds_write_b128 v{base}, {vr(O + X*16 + 4*r, 4)} offset:{off + X*3*4096 + r*1024}")
    def signal(Xs, off):
        a("s_waitcnt lgkmcnt(0)")
        a("s_mov_b64 exec, 1")
        for X in Xs: a(f"ds_add_u32 v{vCA}, v{vONE} offset:{off + 4*X}")
        a("s_mov_b64 exec, -1")
    vOO = 10
    def waitc(lab, off, val):
        a(f"""
        {lab}w:
        ds_read_b32 v{vFL}, v{vCA} offset:{off}
        s_waitcnt lgkmcnt(0)
        v_readfirstlane_b32 s{sFL}, v{vFL}
        s_cmp_ge_u32 s{sFL}, {val}
        s_cbranch_scc1 {lab}k
        s_sleep 1
        s_branch {lab}w
        {lab}k:
        """)
    def own(X):
        TMP = KF
        a("s_nop 7")
        send(1 - X, vT0, 0)
        signal([1 - X], 0)
        waitc(f"L_k2_e{X}", 32 + 4*X, 2)
        for n in (1, 2):
            for r in range(4):
                a(f"ds_read_b128 {vr(TMP + n*16 + 4*r, 4)}, v{vT0} offset:{(X*3 + n)*4096 + r*1024}")
        a(f"""
        v_lshrrev_b32 v{vT1}, 5, v{vLANE}
        s_mul_i32 s{sT1}, s{sH}, 7
        v_add_u32 v{vT1}, s{sT1}, v{vT1}
        v_and_b32 v{vT2}, 1, v{vT1}
        v_lshrrev_b32 v{vT1}, 1, v{vT1}
        v_lshlrev_b32 v{vT1}, 9, v{vT1}
        v_lshl_add_u32 v{vT1}, v{vT2}, 3, v{vT1}
        v_and_b32 v{vT2}, 31, v{vLANE}
        v_lshl_add_u32 v{vOO}, v{vT2}, 4, v{vT1}
        v_mov_b32 v{vT2}, 0x7fffffff
        v_cmp_gt_u32 vcc, 32, v{vLANE}
        s_add_u32 s{sRT}, s{sRT}, {X}
        s_mul_i32 s{sT1}, s{sRT}, 28672
        s_add_u32 s{sT1}, s{sT1}, {OF}
        v_cndmask_b32 v{vOO+1}, v{vT2}, v{vOO}, vcc
        s_mov_b32 s{sKH}, {X}
        """)
        waitc(f"L_k2_p{X}", 4*X, 1)
        for r in range(4):
            a(f"ds_read_b128 {vr(TMP + 4*r, 4)}, v{vT0} offset:{(X*3)*4096 + r*1024}")
        for r in range(0, 16, 2): a(f"v_pk_add_f32 {vr(O+r,2)}, {vr(O+X*16+r,2)}, {vr(TMP+16+r,2)}")
        for r in range(0, 16, 2): a(f"v_pk_add_f32 {vr(O+r,2)}, {vr(O+r,2)}, {vr(TMP+32+r,2)}")
        a("s_waitcnt lgkmcnt(0)")
        for r in range(0, 16, 2): a(f"v_pk_add_f32 {vr(O+r,2)}, {vr(O+r,2)}, {vr(TMP+r,2)}")
    a.label("L_k2_own0")
    own(0)
    a("s_branch L_k2_final")
    a.label("L_k2_send2")
    a(f"""
    s_sub_u32 s{sT0}, s{sKH}, 1
    s_lshl_b32 s{sT0}, s{sT0}, 12
    v_add_u32 v{vT0}, s{sT0}, v{vT0}
    s_nop 7
    """)
    send(0, vT0, 0); send(1, vT0, 0)
    signal([0, 1], 32)
    a("s_waitcnt lgkmcnt(0)")
    a("s_endpgm")
    a.label("L_k2_own1")
    own(1)
    a.label("L_k2_final")
    vL, vL2, vC = 14, 15, 4
    a(f"""
    v_mov_b32 v{vL}, v{O+12}
    v_mov_b32 v{vL2}, v{O+12}
    v_pk_mul_f32 v[2:3], {vr(O+12,2)}, 0
    v_pk_mul_f32 v[4:5], {vr(O,2)}, 0
    v_permlane32_swap_b32 v{vL}, v{vL2}
    v_pk_fma_f32 v[2:3], {vr(O+14,2)}, 0, v[2:3]
    """)
    for r in range(2, 12, 2):
        a(f"v_pk_fma_f32 v[4:5], {vr(O+r,2)}, 0, v[4:5]")
    a(f"""
    v_rcp_f32 v{vL}, v{vL2}
    v_add_f32 v2, v2, v3
    v_cmp_gt_u32 vcc, 32, v{vLANE}
    v_add_f32 v4, v4, v5
    v_add_f32 v4, v4, v{vL2}
    v_cndmask_b32 v2, 0, v2, vcc
    v_mov_b32 v{vL2}, v{vL}
    v_add_f32 v4, v4, v2
    s_cmp_eq_u32 s{sKH}, 2
    s_cbranch_scc1 L_k2_store
    v_mov_b32 v2, {f2u(2.0**-24)}
    v_cmp_ngt_f32 vcc, v4, v2
    v_mov_b32 v2, {f2u(2.0**40)}
    v_cmp_nlt_f32 s[42:43], v4, v2
    s_or_b64 vcc, vcc, s[42:43]
    s_cbranch_vccnz L_k2_fallback
    """)
    a.label("L_k2_store")
    for qd in range(4):
        a(f"v_pk_mul_f32 {vr(O+4*qd,2)}, {vr(O+4*qd,2)}, v[{vL}:{vL2}]")
        a(f"v_pk_mul_f32 {vr(O+4*qd+2,2)}, {vr(O+4*qd+2,2)}, v[{vL}:{vL2}]")
        a(f"v_cvt_pk_bf16_f32 v{O+4*qd}, v{O+4*qd}, v{O+4*qd+1}")
        a(f"v_cvt_pk_bf16_f32 v{O+4*qd+1}, v{O+4*qd+2}, v{O+4*qd+3}")
        vo = vOO + 1 if qd == 3 else vOO
        a(f"buffer_store_dwordx2 {vr(O+4*qd, 2)}, v{vo}, s[{WS}:{WS+3}], s{sT1} offen offset:{qd*512}")
    a("s_endpgm")
    a.label("L_k2_fallback")
    vM, vMN, vAL = 6, 7, 8
    a(f"""
    s_cmp_eq_u32 s{sKH}, 0
    s_cbranch_scc1 L_k2_fbq
    """)
    for r in range(8): a(f"v_mov_b32 v{Q+r}, v{Q+8+r}")
    a(f"""
    L_k2_fbq:
    s_mov_b32 s{sKH}, 2
    s_lshl_b32 s{sKVO}, s{sH}, 18
    s_add_u32 s{sKVO}, s{sKVO}, {KV}
    v_lshlrev_b32 v{vT0}, 4, v{vLANE}
    v_mov_b32 v{vM}, 0xff800000
    s_mov_b32 s{sCNT}, 0
    """)
    for r in range(16): a(f"v_mov_b32 v{O+r}, 0")
    a.label("L_k2_fbloop")
    for f in range(4):
        dst = (KF + f*4) if f < 2 else (VF + (f-2)*4)
        a(f"buffer_load_dwordx4 {vr(dst,4)}, v{vT0}, s[{WS}:{WS+3}], s{sKVO} offen offset:{f*1024}")
    a(f"""
    s_waitcnt vmcnt(0)
    v_mfma_f32_32x32x16_bf16 {vr(S,16)}, {vr(KF,4)}, {vr(Q,4)}, 0
    v_mfma_f32_32x32x16_bf16 {vr(S,16)}, {vr(KF+4,4)}, {vr(Q+4,4)}, {vr(S,16)}
    s_nop 15
    s_nop 3
    v_mov_b32 v{vMN}, v{vM}
    """)
    for r in range(0, 16, 2):
        a(f"v_max3_f32 v{vMN}, v{S+r}, v{S+r+1}, v{vMN}")
    a(f"""
    v_mov_b32 v{vT1}, v{vMN}
    v_mov_b32 v{vT2}, v{vMN}
    s_nop 1
    v_permlane32_swap_b32 v{vT1}, v{vT2}
    s_nop 1
    v_max3_f32 v{vMN}, v{vMN}, v{vT1}, v{vT2}
    v_sub_f32 v{vAL}, v{vM}, v{vMN}
    v_exp_f32 v{vAL}, v{vAL}
    v_mov_b32 v{vM}, v{vMN}
    """)
    for r in range(16):
        a(f"v_sub_f32 v{S+r}, v{S+r}, v{vMN}")
        a(f"v_exp_f32 v{S+r}, v{S+r}")
    for r in range(16):
        a(f"v_mul_f32 v{O+r}, v{O+r}, v{vAL}")
    for k in range(8):
        a(f"v_cvt_pk_bf16_f32 v{P+k}, v{S+2*k}, v{S+2*k+1}")
    a(f"""
    s_nop 1
    v_mfma_f32_32x32x16_bf16 {vr(O,16)}, {vr(VF,4)}, {vr(P,4)}, {vr(O,16)}
    v_mfma_f32_32x32x16_bf16 {vr(O,16)}, {vr(VF+4,4)}, {vr(P+4,4)}, {vr(O,16)}
    s_add_u32 s{sKVO}, s{sKVO}, 4096
    s_add_u32 s{sCNT}, s{sCNT}, 1
    s_nop 15
    s_nop 3
    s_cmp_lt_u32 s{sCNT}, 64
    s_cbranch_scc1 L_k2_fbloop
    s_branch L_k2_final
    """)

    a.label("L_k2_fft")
    a.vm = []; a.lg = []
    sFW, sK, sSL, sMT1, sNT2 = 37, 38, 39, 40, 41
    B1, A1, TW1, TW2, A2, WR, ACC, B2 = 16, 32, 48, 64, 80, 112, 120, 136
    PK = 16
    vL16, vA, vB, vC2 = 6, 7, 8, 9
    def fsync(n):
        lsp = a.newlabel("k2fs"); lok = a.newlabel("k2fo")
        a(f"""
        s_waitcnt lgkmcnt(0)
        v_mov_b32 v{vA}, {LDS_C}
        v_mov_b32 v{vB}, 1
        s_mov_b64 exec, 1
        ds_add_u32 v{vA}, v{vB} offset:{96 + 4*n}
        s_mov_b64 exec, -1
        """)
        a.label(lsp)
        a(f"""
        ds_read_b32 v{vB}, v{vA} offset:{96 + 4*n}
        s_waitcnt lgkmcnt(0)
        v_readfirstlane_b32 s45, v{vB}
        s_cmp_ge_u32 s45, 4
        s_cbranch_scc1 {lok}
        s_sleep 1
        s_branch {lsp}
        """)
        a.label(lok)
    a(f"""
    {'s_setprio 3' if 'prio' in EXP else ''}
    s_sub_u32 s{sFW}, s{sW}, 8
    v_lshlrev_b32 v{vL16}, 4, v{vLANE}
    s_lshl_b32 s{sT0}, s{sH}, 18
    s_add_u32 s{sT0}, s{sT0}, {KV}
    s_lshl_b32 s{sT2}, s{sFW}, 12
    s_add_u32 s{sT0}, s{sT0}, s{sT2}
    s_and_b32 s{sT1}, s2, {0 if 'oldmap' in EXP else 1}
    s_lshl_b32 s{sT1}, s{sT1}, 17
    s_add_u32 s{sT0}, s{sT0}, s{sT1}
    s_barrier
    """)
    def kvdma(c):
        a(f"s_add_u32 m0, s{sT2}, {c*CH}")
        a(f"s_add_u32 s{sT1}, s{sT0}, {c*CH}")
        for f in range(4):
            a.vmem(f"buffer_load_dwordx4 v{vL16}, s[{WS}:{WS+3}], s{sT1} offen offset:{f*1024} lds", f"kv{c//2}")
    def kvsig(u):
        a.wait_vm(f"kv{u}")
        a(f"""
        v_mov_b32 v{vA}, {LDS_C}
        v_mov_b32 v{vB}, 2
        s_mov_b64 exec, 1
        ds_add_u32 v{vA}, v{vB} offset:{4*(u-1)}
        s_mov_b64 exec, -1
        """)
    kvdma(2); kvdma(3)
    if "late45" in EXP: kvsig(1)
    kvdma(4); kvdma(5)
    if "late45" not in EXP: kvsig(1)
    kvsig(2)
    a(f"""
    s_waitcnt lgkmcnt(0)
    {"s_endpgm" if "nofft" in EXP else ""}
    """)
    def prefetch(track):
        a(f"""
        s_load_dwordx2 s[50:51], s[0:1], 40
        s_getpc_b64 s[52:53]
        s_add_u32 s52, s52, tbl_gf@rel32@lo+4
        s_addc_u32 s53, s53, tbl_gf@rel32@hi+12
        s_getpc_b64 s[54:55]
        s_add_u32 s54, s54, k3_kernel@rel32@lo+4
        s_addc_u32 s55, s55, k3_kernel@rel32@hi+12
        s_lshr_b32 s{sT0}, s2, 3
        s_lshl_b32 s{sT0}, s{sT0}, 2
        s_add_u32 s{sT0}, s{sT0}, s{sFW}
        s_mul_i32 s{sT0}, s{sT0}, 3136
        v_lshlrev_b32 v{vA}, 7, v{vLANE}
        v_min_u32 v{vB}, 3200, v{vA}
        s_waitcnt lgkmcnt(0)
        """)
        srd(a, 56, "s50", "s51", 448*896)
        srd(a, 60, "s52", "s53", 448*896)
        a.vmem(f"buffer_load_dword v0, v{vB}, s[56:59], s{sT0} offen", "pf")
        a.vmem(f"buffer_load_dword v0, v{vB}, s[60:63], s{sT0} offen", "pf")
        srd(a, 56, "s54", "s55", "L_k3_end-k3_kernel")
        a.vmem(f"buffer_load_dword v0, v{vA}, s[56:59], 0 offen", "pf")
    a(f"""
    s_cmp_ge_u32 s2, 225
    s_cbranch_scc1 L_k2_pfonly
    s_lshr_b32 s{sMT1}, s{sFW}, 1
    s_and_b32 s{sNT2}, s{sFW}, 1
    s_cmp_eq_u32 s2, 224
    s_cselect_b32 s{sSL}, 0, s2
    s_mul_i32 s{sT0}, s{sSL}, {X1S}
    s_lshl_b32 s{sT1}, s{sNT2}, 12
    s_add_u32 s{sT0}, s{sT0}, s{sT1}
    s_add_u32 s{sT0}, s{sT0}, {X1F}
    s_lshl_b32 s{sT1}, s{sMT1}, 12
    s_lshl_b32 s{sT2}, s{sFW}, 12
    s_add_u32 s{sT3}, s{sT2}, {FFT_TW1}
    """)
    for ks in range(4):
        a.vmem(f"buffer_load_dwordx4 {vr(B1+4*ks,4)}, v{vL16}, s[{WS}:{WS+3}], s{sT0} offen offset:{ks*1024}", "b1")
    for ks in range(4):
        a.vmem(f"buffer_load_dwordx4 {vr(A1+4*ks,4)}, v{vL16}, s[{TB}:{TB+3}], s{sT1} offen offset:{ks*1024}", "a1")
    for i in range(4):
        a.vmem(f"buffer_load_dwordx4 {vr(TW1+4*i,4)}, v{vL16}, s[{TB}:{TB+3}], s{sT3} offen offset:{i*1024}", "tw1")
    a(f"""
    s_lshl_b32 s{sT1}, s{sFW}, 13
    s_add_u32 s{sT1}, s{sT1}, {FFT_A2}
    s_add_u32 s{sT0}, s{sT1}, 4096
    s_add_u32 s{sT3}, s{sT2}, {FFT_TW2}
    """)
    for ks in range(8):
        so = sT1 if ks < 4 else sT0
        a.vmem(f"buffer_load_dwordx4 {vr(A2+4*ks,4)}, v{vL16}, s[{TB}:{TB+3}], s{so} offen offset:{(ks%4)*1024}", "a2")
    a(f"""
    v_and_b32 v{vT0}, 31, v{vLANE}
    v_lshrrev_b32 v{vT1}, 5, v{vLANE}
    v_lshrrev_b32 v{vT2}, 3, v{vT0}
    v_lshl_add_u32 v{vT2}, v{vT1}, 5, v{vT2}
    v_mul_u32_u24 v{vT2}, {UBS}, v{vT2}
    v_and_b32 v{vT3}, 7, v{vT0}
    v_lshl_add_u32 v{vT2}, v{vT3}, 2, v{vT2}
    s_lshl_b32 s{sT0}, s2, 5
    s_mul_i32 s{sT1}, s{sFW}, {64*UBS}
    s_add_u32 s{sT0}, s{sT0}, s{sT1}
    s_add_u32 s{sT0}, s{sT0}, {WF}
    """)
    a(f"v_mov_b32 v{vC2}, v{vT2}")
    a(f"s_mov_b32 s46, s{sT0}")
    a(f"s_mov_b32 s47, s{sT3}")
    vW1, vR2, vWY, vW3, vR4, vZO = 10, 11, 12, 13, 14, 15
    a(f"""
    v_mul_u32_u24 v{vT2}, {8*272}, v{vT1}
    v_lshl_add_u32 v{vT2}, v{vT0}, 2, v{vT2}
    s_mul_i32 s{sT0}, s{sMT1}, {16*272}
    s_lshl_b32 s{sT1}, s{sNT2}, 7
    s_add_u32 s{sT0}, s{sT0}, s{sT1}
    s_add_u32 s{sT0}, s{sT0}, {LDS_T}
    v_add_u32 v{vW1}, s{sT0}, v{vT2}
    v_mul_u32_u24 v{vT2}, 272, v{vT0}
    v_lshl_add_u32 v{vT3}, v{vT1}, 4, v{vT2}
    v_add_u32 v{vR2}, {LDS_T}, v{vT3}
    v_lshl_add_u32 v{vT3}, v{vT1}, 5, v{vT2}
    s_lshl_b32 s{sT0}, s{sFW}, 6
    s_add_u32 s{sT0}, s{sT0}, {LDS_Y}
    v_add_u32 v{vWY}, s{sT0}, v{vT3}
    v_mul_u32_u24 v{vT2}, {8*144}, v{vT1}
    v_lshl_add_u32 v{vT2}, v{vT0}, 2, v{vT2}
    s_mul_i32 s{sT0}, s{sFW}, {16*144}
    s_add_u32 s{sT0}, s{sT0}, {LDS_R}
    v_add_u32 v{vW3}, s{sT0}, v{vT2}
    v_mul_u32_u24 v{vT2}, 144, v{vT0}
    v_lshl_add_u32 v{vT2}, v{vT1}, 4, v{vT2}
    s_mul_i32 s{sT0}, s{sNT2}, {32*144}
    s_add_u32 s{sT0}, s{sT0}, {LDS_R}
    v_add_u32 v{vR4}, s{sT0}, v{vT2}
    v_lshlrev_b32 v{vT2}, 4, v{vT0}
    v_lshl_add_u32 v{vZO}, v{vT1}, 10, v{vT2}
    """)
    a.wait_vm(["b1", "a1"])
    a(f"""
    s_cmp_eq_u32 s2, 0
    s_cbranch_scc1 L_k2_sp0
    s_cmp_eq_u32 s2, 224
    s_cbranch_scc0 L_k2_spdone
    """)
    for r in range(16): a(f"v_lshrrev_b32 v{B1+r}, 16, v{B1+r}")
    a("s_branch L_k2_spdone")
    a.label("L_k2_sp0")
    for r in range(16): a(f"v_and_b32 v{B1+r}, 0xffff, v{B1+r}")
    a.label("L_k2_spdone")
    a("s_nop 1")
    def mm(A, B, n):
        for ks in range(n):
            c = "0" if ks == 0 else vr(ACC, 16)
            a(f"v_mfma_f32_32x32x16_bf16 {vr(ACC,16)}, {vr(A+4*ks,4)}, {vr(B+4*ks,4)}, {c}")
    def cmul_tw(TW):
        for p in range(8):
            ar, ai, tr, ti = ACC+2*p, ACC+2*p+1, TW+2*p, TW+2*p+1
            a(f"""
            v_mul_f32 v{vT2}, v{ar}, v{tr}
            v_mul_f32 v{vT3}, v{ar}, v{ti}
            v_fma_f32 v{vT2}, -v{ai}, v{ti}, v{vT2}
            v_fmac_f32 v{vT3}, v{ai}, v{tr}
            v_cvt_pk_bf16_f32 v{PK+p}, v{vT2}, v{vT3}
            """)
    mm(A1, B1, 4)
    a.wait_vm("tw1")
    a("s_nop 15")
    cmul_tw(TW1)
    for p in range(8):
        a(f"ds_write_b32 v{vW1}, v{PK+p} offset:{p*272}")
    for p in range(8):
        a.vmem(f"buffer_load_dword v{WR+p}, v{vC2}, s[{WS}:{WS+3}], s46 offen", "w")
        a(f"s_add_u32 s46, s46, {4*UBS}")
    for i in range(4):
        a.vmem(f"buffer_load_dwordx4 {vr(TW2+4*i,4)}, v{vL16}, s[{TB}:{TB+3}], s47 offen offset:{i*1024}", "tw2")
    if "nopf" not in EXP: prefetch(1)
    fsync(0)
    for ks in range(8):
        a.lds(f"ds_read_b128 {vr(B2+4*ks,4)}, v{vR2} offset:{ks*32}", f"b2_{ks}")
    a.wait_vm("a2")
    for ks in range(8):
        a.wait_lg(f"b2_{ks}")
        c = "0" if ks == 0 else vr(ACC, 16)
        a(f"v_mfma_f32_32x32x16_bf16 {vr(ACC,16)}, {vr(A2+4*ks,4)}, {vr(B2+4*ks,4)}, {c}")
    a.wait_vm("w")
    for p in range(8):
        a(f"v_lshlrev_b32 v{TW1+2*p}, 16, v{WR+p}")
        a(f"v_and_b32 v{TW1+2*p+1}, 0xffff0000, v{WR+p}")
    for p in range(8):
        ar, ai, tr, ti = ACC+2*p, ACC+2*p+1, TW1+2*p, TW1+2*p+1
        a(f"""
        v_mul_f32 v{vT2}, v{ar}, v{tr}
        v_mul_f32 v{vT3}, v{ar}, v{ti}
        v_fma_f32 v{vT2}, -v{ai}, v{ti}, v{vT2}
        v_fmac_f32 v{vT3}, v{ai}, v{tr}
        v_cvt_pk_bf16_f32 v{PK+p}, v{vT2}, -v{vT3}
        """)
    a(f"""
    ds_write_b128 v{vWY}, {vr(PK,4)}
    ds_write_b128 v{vWY}, {vr(PK+4,4)} offset:16
    """)
    fsync(1)
    for ks in range(8):
        a.lds(f"ds_read_b128 {vr(B2+4*ks,4)}, v{vR2} offset:{ks*32 + (LDS_Y-LDS_T)}", f"b3_{ks}")
    for ks in range(8):
        a.wait_lg(f"b3_{ks}")
        c = "0" if ks == 0 else vr(ACC, 16)
        a(f"v_mfma_f32_32x32x16_bf16 {vr(ACC,16)}, {vr(A2+4*ks,4)}, {vr(B2+4*ks,4)}, {c}")
    a.wait_vm("tw2")
    a("s_nop 15")
    cmul_tw(TW2)
    for p in range(8):
        a(f"ds_write_b32 v{vW3}, v{PK+p} offset:{p*144}")
    fsync(2)
    for ks in range(4):
        a.lds(f"ds_read_b128 {vr(B2+4*ks,4)}, v{vR4} offset:{ks*32}", f"b4_{ks}")
    for ks in range(4):
        a.wait_lg(f"b4_{ks}")
        c = "0" if ks == 0 else vr(ACC, 16)
        a(f"v_mfma_f32_32x32x16_bf16 {vr(ACC,16)}, {vr(A1+4*ks,4)}, {vr(B2+4*ks,4)}, {c}")
    a(f"""
    s_mul_i32 s{sT0}, s2, {2*ZTS}
    s_cmp_eq_u32 s2, 224
    s_cselect_b32 s{sT0}, {ZTS}, s{sT0}
    s_lshl_b32 s{sT1}, s{sNT2}, 9
    s_add_u32 s{sT0}, s{sT0}, s{sT1}
    s_lshl_b32 s{sT1}, s{sMT1}, 11
    s_add_u32 s{sT0}, s{sT0}, s{sT1}
    s_add_u32 s{sT0}, s{sT0}, {ZT}
    s_add_u32 s{sT1}, s{sT0}, {ZTS}
    s_nop 7
    """)
    for q in range(4):
        a(f"v_cvt_pk_bf16_f32 v{PK+q}, v{ACC+4*q}, v{ACC+4*q+2}")
        a(f"v_cvt_pk_bf16_f32 v{PK+4+q}, -v{ACC+4*q+1}, -v{ACC+4*q+3}")
    a(f"""
    buffer_store_dwordx4 {vr(PK,4)}, v{vZO}, s[{WS}:{WS+3}], s{sT0} offen
    s_cmp_eq_u32 s{sSL}, 0
    s_cbranch_scc1 L_k2_gate
    buffer_store_dwordx4 {vr(PK+4,4)}, v{vZO}, s[{WS}:{WS+3}], s{sT1} offen
    """)
    a.label("L_k2_gate")
    a("s_endpgm")
    a.label("L_k2_pfonly")
    if "nopf" not in EXP: prefetch(0)
    a("s_endpgm")
    a.label("L_k2_end")
    a("s_endpgm")
    return a.text(), kdesc(name, 168, 64), f"; @launch kernel={name} grid=(256,1,1) block=(768,1,1) lds={K2_LDS}"
```

```python
from asmlib import *
from layout import *
from k1 import spin_ge
import os
EXP = os.environ.get('K3EXP', '')
DEPTH = int(os.environ.get('K3DEPTH', '4'))
DPF = int(os.environ.get('K3DPF', '2'))

SLOT = 8192
NCH = 14
LDS_X = SLOT * NCH
LDS_F = LDS_X + 16384
K3_LDS = LDS_F + 128

def gen_k3():
    a = Asm()
    name = "k3_kernel"
    a.lines.append(khead(name))
    WS, WO, GF, OUT = 4, 8, 12, 16
    sW, sRB, sCT, sT0, sT1, sT2, sT3, sJ, sFL = 30, 31, 32, 33, 34, 35, 36, 37, 38
    vLANE = 1
    vT0, vT1, vT2, vT3 = 2, 3, 4, 5
    vFA, vFT, vONE, vL16 = 6, 7, 8, 9
    a(f"""
    s_cmp_ge_u32 s2, 224
    s_cbranch_scc1 L_k3_end
    s_load_dwordx2 s[24:25], s[0:1], 72
    s_load_dwordx2 s[26:27], s[0:1], 40
    s_load_dwordx2 s[28:29], s[0:1], 56
    s_getpc_b64 s[20:21]
    s_add_u32 s20, s20, tbl_gf@rel32@lo+4
    s_addc_u32 s21, s21, tbl_gf@rel32@hi+12
    v_and_b32 v{vLANE}, 63, v0
    v_lshrrev_b32 v{vT0}, 6, v0
    s_and_b32 s{sT0}, s2, 7
    s_lshr_b32 s{sT1}, s2, 3
    v_readfirstlane_b32 s{sW}, v{vT0}
    s_lshl_b32 s{sRB}, s{sT0}, 2
    s_and_b32 s{sT2}, s{sT1}, 3
    s_add_u32 s{sRB}, s{sRB}, s{sT2}
    s_lshr_b32 s{sCT}, s{sT1}, 2
    s_and_b32 s{sJ}, s{sW}, 3
    v_lshlrev_b32 v{vL16}, 4, v{vLANE}
    v_mov_b32 v{vFA}, {LDS_F}
    v_mov_b32 v{vONE}, 1
    s_cmp_ge_u32 s{sW}, 4
    s_cbranch_scc0 L_k3_compute
    """)
    vTO, vTF = 10, 11
    sM0T, sWOb, sZTb = 41, 43, 44
    a(f"""
    v_lshrrev_b32 v{vT0}, 3, v{vLANE}
    v_and_b32 v{vT1}, 7, v{vLANE}
    v_bfe_u32 v{vT2}, v{vLANE}, 4, 1
    v_lshlrev_b32 v{vT2}, 2, v{vT2}
    v_xor_b32 v{vT1}, v{vT1}, v{vT2}
    v_lshlrev_b32 v{vT1}, 4, v{vT1}
    v_mul_u32_u24 v{vT2}, 896, v{vT0}
    v_add_u32 v{vTO}, v{vT2}, v{vT1}
    v_mul_u32_u24 v{vT2}, {ZTS}, v{vT0}
    v_add_u32 v{vTF}, v{vT2}, v{vT1}
    s_lshl_b32 s{sM0T}, s{sJ}, 11
    s_mul_i32 s{sWOb}, s{sJ}, {16*896}
    s_lshl_b32 s{sT0}, s{sCT}, 7
    s_add_u32 s{sWOb}, s{sWOb}, s{sT0}
    s_mul_i32 s{sZTb}, s{sJ}, {16*ZTS}
    s_lshl_b32 s{sT0}, s{sRB}, 7
    s_add_u32 s{sZTb}, s{sZTb}, s{sT0}
    s_add_u32 s{sZTb}, s{sZTb}, {ZT}
    """)
    a("s_waitcnt lgkmcnt(0)")
    srd(a, WS, "s24", "s25", WS_USED)
    srd(a, WO, "s26", "s27", 448*896)
    def issue(i):
        slot = i * SLOT
        br = i & 1; c = i >> 1
        tag = f"c{i}"
        rs = 896 if br == 0 else ZTS
        T = WO if br == 0 else WS
        vT = vTO if br == 0 else vTF
        for ii in range(2):
            a(f"s_add_u32 m0, s{sM0T}, {slot + ii*1024}")
            a(f"s_add_u32 s{sT0}, s{sWOb if br == 0 else sZTb}, {(64*c + 8*ii)*rs}")
            a.vmem(f"buffer_load_dwordx4 v{vT}, s[{T}:{T+3}], s{sT0} offen lds", tag)
    issue(0); issue(1)
    a("s_barrier")
    for i in range(2, DEPTH): issue(i)
    for i in range(NCH):
        a.wait_vm(f"c{i}")
        a(f"""
        s_mov_b64 exec, 1
        ds_add_u32 v{vFA}, v{vONE} offset:{4*i}
        s_mov_b64 exec, -1
        """)
        if i == 0: a.comment("STAMP2")
        if i == 6: a.comment("STAMP3")
        if i == 13: a.comment("STAMP4")
        n = i + DEPTH
        if n < NCH: issue(n)
    a("s_waitcnt lgkmcnt(0)")
    a("s_endpgm")

    a.label("L_k3_compute")
    a.vm = []; a.lg = []
    vR = [[10, 11], [12, 13]]
    vG, vOO, vXW, vXR = 14, 16, 17, 18
    vXS, vOS = 19, 20
    TF, ACC, DF = 24, 88, 120
    NV = 232
    sBR, sIDX, sD = 40, 41, 42
    DD = 44
    a(f"""
    v_and_b32 v{vT0}, 31, v{vLANE}
    v_lshl_add_u32 v{vT1}, v{vT0}, 2, v{vFA}
    v_mov_b32 v{vT2}, 0
    ds_write_b32 v{vT1}, v{vT2}
    s_lshr_b32 s{sBR}, s{sW}, 1
    s_and_b32 s{sIDX}, s{sW}, 1
    s_cmp_eq_u32 s{sBR}, 0
    s_cselect_b32 s{sT0}, s{sRB}, s{sCT}
    s_cselect_b32 s{sT1}, {OF}, 0
    s_lshl_b32 s{sT0}, s{sT0}, 1
    s_add_u32 s{sT0}, s{sT0}, s{sIDX}
    s_mul_i32 s{sD}, s{sT0}, 28672
    s_add_u32 s{sD}, s{sD}, s{sT1}
    s_waitcnt lgkmcnt(0)
    s_mov_b32 s{DD+2}, {WS_USED}
    s_cmp_eq_u32 s{sBR}, 0
    s_cselect_b32 s{DD}, s24, s20
    s_cselect_b32 s{DD+1}, s25, s21
    s_cselect_b32 s{DD+2}, s{DD+2}, {14*28672}
    s_mov_b32 s{DD+3}, 0x20000
    s_and_b32 s{DD+1}, s{DD+1}, 0xffff
    """)
    def dload(c):
        for ks in range(4):
            a.vmem(f"buffer_load_dwordx4 {vr(DF + (c*4 + ks)*4, 4)}, v{vL16}, s[{DD}:{DD+3}], s{sD} offen offset:{ks*1024}", f"d{c}")
        a(f"s_add_u32 s{sD}, s{sD}, 4096")
    dload(0)
    a("s_barrier")
    for c in range(1, DPF): dload(c)
    srd(a, WS, "s24", "s25", WS_USED)
    srd(a, OUT, "s28", "s29", 2048*896)
    sTT = 48
    a(f"""
    s_xor_b32 s{sTT}, s{sIDX}, s{sBR}
    v_lshlrev_b32 v{vT1}, 3, v{vT0}
    s_lshl_b32 s{sT0}, s{sRB}, 9
    s_lshl_b32 s{sT1}, s{sTT}, 8
    s_add_u32 s{sT0}, s{sT0}, s{sT1}
    s_add_u32 s{sT0}, s{sT0}, {GT}
    """)
    a.vmem(f"buffer_load_dwordx2 {vr(vG,2)}, v{vT1}, s[{WS}:{WS+3}], s{sT0} offen", "g")
    a(f"""
    v_lshrrev_b32 v{vT1}, 5, v{vLANE}
    v_bfe_u32 v{vT2}, v{vLANE}, 2, 2
    v_lshl_add_u32 v{vT3}, v{vT1}, 3, v{vT2}
    v_lshlrev_b32 v{vT3}, 7, v{vT3}
    v_lshrrev_b32 v{vT2}, 1, v{vT2}
    v_lshl_add_u32 v{vT3}, v{vT2}, 6, v{vT3}
    v_bfe_u32 v{vT2}, v{vLANE}, 4, 1
    v_lshl_add_u32 v{vT3}, v{vT2}, 5, v{vT3}
    v_and_b32 v{vT2}, 3, v{vLANE}
    v_lshl_add_u32 v{vT3}, v{vT2}, 3, v{vT3}
    s_lshl_b32 s{sT0}, s{sBR}, 13
    v_add_u32 v{vR[0][0]}, s{sT0}, v{vT3}
    v_xor_b32 v{vR[0][1]}, 64, v{vR[0][0]}
    v_add_u32 v{vR[1][0]}, 0x10000, v{vR[0][0]}
    v_add_u32 v{vR[1][1]}, 0x10000, v{vR[0][1]}
    s_lshl_b32 s{sT0}, s{sBR}, 2
    v_add_u32 v{vFA}, s{sT0}, v{vFA}
    v_and_b32 v{vT2}, 7, v{vT0}
    v_mul_u32_u24 v{vOO}, 57344, v{vT2}
    v_lshrrev_b32 v{vT2}, 3, v{vT0}
    v_mul_u32_u24 v{vT2}, 896, v{vT2}
    v_add_u32 v{vOO}, v{vOO}, v{vT2}
    v_lshl_add_u32 v{vOO}, v{vT1}, 4, v{vOO}
    s_lshr_b32 s{sT0}, s{sRB}, 3
    s_lshl_b32 s{sT0}, s{sT0}, 9
    s_and_b32 s{sT1}, s{sRB}, 7
    s_lshl_b32 s{sT1}, s{sT1}, 3
    s_add_u32 s{sT0}, s{sT0}, s{sT1}
    s_lshl_b32 s{sT1}, s{sTT}, 2
    s_add_u32 s{sT0}, s{sT0}, s{sT1}
    s_mul_i32 s{sT0}, s{sT0}, 896
    s_lshl_b32 s{sT1}, s{sCT}, 7
    s_add_u32 s{sT0}, s{sT0}, s{sT1}
    s_lshl_b32 s{sT1}, s{sIDX}, 6
    s_add_u32 s{sT3}, s{sT0}, s{sT1}
    v_add_u32 v{vXR}, {LDS_X}, v{vL16}
    v_mul_u32_u24 v{vXW}, 80, v{vT0}
    v_lshl_add_u32 v{vXW}, v{vT1}, 3, v{vXW}
    v_add_u32 v{vXW}, {LDS_X}, v{vXW}
    v_lshrrev_b32 v{vT2}, 2, v{vLANE}
    v_and_b32 v{vT3}, 3, v{vLANE}
    v_mul_u32_u24 v{vXS}, 80, v{vT2}
    v_lshl_add_u32 v{vXS}, v{vT3}, 4, v{vXS}
    v_add_u32 v{vXS}, {LDS_X}, v{vXS}
    v_and_b32 v{vOS}, 7, v{vT2}
    v_mul_u32_u24 v{vOS}, 57344, v{vOS}
    v_lshrrev_b32 v{vT2}, 3, v{vT2}
    v_mul_u32_u24 v{vT2}, 896, v{vT2}
    v_add_u32 v{vOS}, v{vOS}, v{vT2}
    v_lshl_add_u32 v{vOS}, v{vT3}, 4, v{vOS}
    s_cmp_eq_u32 s{sBR}, 1
    s_cbranch_scc1 L_k3_F
    """)
    snap = a.snapshot()
    def main(br):
        def treads(c):
            off = c * 16384; win = off // 65536; off %= 65536
            L = []
            for ks in range(4):
                for hf in range(2):
                    for rho in range(2):
                        L.append(f"ds_read_b64_tr_b16 {vr(TF + (c%2)*32 + ks*8 + hf*4 + rho*2, 2)}, v{vR[win][hf]} offset:{off + ks*2048 + rho*512}")
            return L
        def mf(c):
            L = []
            for ks in range(4):
                for hf in range(2):
                    d = vr(ACC + hf*16, 16)
                    cc = "0" if (c == 0 and ks == 0) else d
                    T = vr(TF + (c%2)*32 + ks*8 + hf*4, 4); D = vr(DF + (c*4 + ks)*4, 4)
                    L.append(f"v_mfma_f32_32x32x16_bf16 {d}, {T}, {D}, {cc}" if br == 0 else f"v_mfma_f32_32x32x16_bf16 {d}, {D}, {T}, {cc}")
            return L
        spin_ge(a, vFA, vFT, sFL, 0, 4)
        a(f"ds_read_b32 v{vFT}, v{vFA} offset:8")
        for l in treads(0): a(l)
        for c in range(7):
            if c + DPF < 7: dload(c + DPF)
            M = mf(c)
            if c == 6:
                a.comment("STAMP4")
                a.wait_vm(f"d{c}")
                for m in range(8):
                    a(f"s_waitcnt lgkmcnt({14 - 2*m})")
                    a(M[m])
                break
            lslow = a.newlabel("k3slow"); ljoin = a.newlabel("k3join")
            a(f"""
            s_waitcnt lgkmcnt(15)
            v_readfirstlane_b32 s{sFL}, v{vFT}
            """)
            a.wait_vm(f"d{c}")
            a(f"""
            s_cmp_ge_u32 s{sFL}, 4
            s_cbranch_scc0 {lslow}
            """)
            R = ([f"ds_read_b32 v{vFT}, v{vFA} offset:{8*(c+2)}"] if c + 2 < 7 else [f"ds_read_b32 v{vFT}, v{vFA}"]) + treads(c + 1)
            ri = 0
            for m in range(8):
                a(f"s_waitcnt lgkmcnt({min(15, 14 - 2*m + ri)})")
                a(M[m])
                for _ in range(3 if m < 6 else 0):
                    if ri < len(R): a(R[ri]); ri += 1
            while ri < len(R): a(R[ri]); ri += 1
            a(f"s_branch {ljoin}")
            a.label(lslow)
            for m in range(8):
                a(f"s_waitcnt lgkmcnt({14 - 2*m})")
                a(M[m])
            spin_ge(a, vFA, vFT, sFL, 8*(c+1), 4)
            for l in R: a(l)
            a.label(ljoin)
    def tail(w):
        br = w >> 1; idx = w & 1
        keep = idx if br == 0 else 1 - idx
        dest = {0: 3, 1: 2, 2: 0, 3: 1}[w]
        fo = 64 - 4*br
        a("s_nop 15")
        for r in range(4):
            a(f"ds_write_b128 v{vXR}, {vr(ACC + (1-keep)*16 + 4*r, 4)} offset:{dest*4096 + r*1024}")
        a(f"""
        s_waitcnt vmcnt(0) lgkmcnt(0)
        ds_write_b32 v{vFA}, v{vONE} offset:{fo + 4*dest}
        """)
        R = TF
        gown = vG + 1 if br == 0 else vG
        goth = vG if br == 0 else vG + 1
        for r in range(16): a(f"v_mul_f32 v{R+r}, v{ACC + keep*16 + r}, v{gown}")
        spin_ge(a, vFA, vFT, sFL, fo + 4*w, 1)
        for r in range(4):
            a(f"ds_read_b128 {vr(TF + 32 + 4*r, 4)}, v{vXR} offset:{w*4096 + r*1024}")
        PKD = TF + 16
        for qd in range(4):
            a(f"s_waitcnt lgkmcnt({3 - qd})")
            for r in range(4): a(f"v_fmac_f32 v{R+4*qd+r}, v{TF+32+4*qd+r}, v{goth}")
            a(f"v_cvt_pk_bf16_f32 v{PKD+2*qd}, v{R+4*qd}, v{R+4*qd+1}")
            a(f"v_cvt_pk_bf16_f32 v{PKD+2*qd+1}, v{R+4*qd+2}, v{R+4*qd+3}")
        if "oldst" in EXP:
            a("s_nop 1")
            for h in range(2):
                a(f"v_permlane32_swap_b32 v{PKD+4*h}, v{PKD+4*h+2}")
                a(f"v_permlane32_swap_b32 v{PKD+4*h+1}, v{PKD+4*h+3}")
            for h in range(2):
                a(f"buffer_store_dwordx4 {vr(PKD+4*h,4)}, v{vOO}, s[{OUT}:{OUT+3}], s{sT3} offen offset:{h*32}")
        else:
            for qd in range(4):
                a(f"ds_write_b64 v{vXW}, {vr(PKD+2*qd,2)} offset:{w*4096 + qd*16}")
            a("s_waitcnt lgkmcnt(0)")
            for h in range(2):
                a(f"ds_read_b128 {vr(R+4*h,4)}, v{vXS} offset:{w*4096 + h*16*80}")
            for h in range(2):
                a(f"s_waitcnt lgkmcnt({1-h})")
                a(f"buffer_store_dwordx4 {vr(R+4*h,4)}, v{vOS}, s[{OUT}:{OUT+3}], s{sT3} offen offset:{h*2*896}")
        a("s_endpgm")
    main(0)
    a(f"s_cmp_eq_u32 s{sIDX}, 1")
    a("s_cbranch_scc1 L_k3_t1")
    tail(0)
    a.label("L_k3_t1"); tail(1)
    a.label("L_k3_F"); a.restore(snap)
    main(1)
    a(f"s_cmp_eq_u32 s{sIDX}, 1")
    a("s_cbranch_scc1 L_k3_t3")
    tail(2)
    a.label("L_k3_t3"); tail(3)
    a.label("L_k3_end")
    a("s_endpgm")
    return a.text(), kdesc(name, NV, 64), f"; @launch kernel={name} grid=(224,1,1) block=(512,1,1) lds={K3_LDS}"
```

```python
kernels = []
def kernel(name, body, nrep, block, grid=256, pre="", vgpr=128, accum=None, ninit=88, lds=0):
    if accum is None: accum = vgpr
    code = f"""
.globl {name}
.p2align 8
.type {name},@function
{name}:
    s_load_dwordx4 s[4:7], s[0:1], 0
    v_lshrrev_b32 v1, 6, v0
    s_nop 1
    v_readfirstlane_b32 s14, v1
    s_mul_i32 s15, s2, {block//64}
    s_add_u32 s15, s15, s14
    s_lshl_b32 s15, s15, 3
    v_and_b32 v{ninit}, 63, v0
"""
    for i in range(0, ninit):
        code += f"    v_mov_b32 v{i}, 0.5\n"
    code += "    s_waitcnt lgkmcnt(0)\n"
    code += pre
    code += f"""
    s_waitcnt vmcnt(0) lgkmcnt(0)
    s_barrier
    s_memtime s[8:9]
    s_memrealtime s[40:41]
    s_waitcnt lgkmcnt(0)
    s_mov_b32 s10, {nrep}
L_{name}:
{body}
    s_sub_u32 s10, s10, 1
    s_cmp_lg_u32 s10, 0
    s_cbranch_scc1 L_{name}
    s_waitcnt vmcnt(0) lgkmcnt(0)
    s_memtime s[12:13]
    s_memrealtime s[42:43]
    s_waitcnt lgkmcnt(0)
    s_sub_u32 s12, s12, s8
    s_sub_u32 s42, s42, s40
    s_nop 15
    s_nop 15
    v_mov_b32 v2, s12
    v_mov_b32 v3, s42
    v_mov_b32 v1, s15
    global_store_dwordx2 v1, v[2:3], s[4:5]
    s_endpgm
"""
    desc = f"""
.amdhsa_kernel {name}
  .amdhsa_next_free_vgpr {vgpr}
  .amdhsa_next_free_sgpr 48
  .amdhsa_accum_offset {accum}
  .amdhsa_group_segment_fixed_size 0
  .amdhsa_kernarg_size 16
  .amdhsa_user_sgpr_count 2
  .amdhsa_user_sgpr_kernarg_segment_ptr 1
  .amdhsa_system_sgpr_workgroup_id_x 1
.end_amdhsa_kernel
"""
    kernels.append((name, code, desc, grid, block, lds))

def emit(fn):
    out = ""
    for name, code, desc, grid, block, lds in kernels:
        out += f"; @launch kernel={name} grid=({grid},1,1) block=({block},1,1) lds={lds}\n"
    out += '.amdgcn_target "amdgcn-amd-amdhsa--gfx950"\n.text\n'
    for name, code, desc, grid, block, lds in kernels:
        out += code
    out += '.section .rodata,"a"\n.p2align 6\n'
    for name, code, desc, grid, block, lds in kernels:
        out += ".p2align 6\n" + desc
    open(fn, "w").write(out)
```

```python
from mbgen import *
def vr(b, n): return f"v[{b}:{b+n-1}]"
Q, KF, VF, S, P, O = 16, 32, 48, 64, 96, 112
def body(opt):
    L = []
    for it in range(4):
        par = it % 2
        if it % 2 == 0:
            kb = 1 if it == 0 else 0; vb = 0 if it == 0 else 1
            for f in range(2): L.append(f"ds_read_b128 {vr(KF + kb*8 + f*4, 4)}, v7 offset:{it*4096 + f*1024}")
            for f in range(2): L.append(f"ds_read_b128 {vr(VF + vb*8 + f*4, 4)}, v7 offset:{it*4096 + 2048 + f*1024}")
        else: L.append("s_waitcnt lgkmcnt(0)")
        s0 = S + par*16; p0 = P + par*8
        e = [f"v_exp_f32 v{s0+k}, v{s0+k}" for k in range(16)]
        cv = [f"v_cvt_pk_bf16_f32 v{p0+k}, v{s0+2*k}, v{s0+2*k+1}" for k in range(8)]
        kb = [0, 1, 1, 0][it]; vb = [1, 0, 0, 1][it]; o = 1 - par
        if opt == "m32":
            d = vr(S + o*16, 16); od = vr(O + o*16, 16)
            m = [[f"v_mfma_f32_32x32x16_bf16 {d}, {vr(KF + kb*8, 4)}, {vr(Q + o*8, 4)}, 0"],
                 [f"v_mfma_f32_32x32x16_bf16 {od}, {vr(VF + vb*8, 4)}, {vr(P + o*8, 4)}, {od}"],
                 [f"v_mfma_f32_32x32x16_bf16 {d}, {vr(KF + kb*8 + 4, 4)}, {vr(Q + o*8 + 4, 4)}, {d}"],
                 [f"v_mfma_f32_32x32x16_bf16 {od}, {vr(VF + vb*8 + 4, 4)}, {vr(P + o*8 + 4, 4)}, {od}"]]
            if "swappv" in VAR:
                m[1] = [f"v_mfma_f32_32x32x16_bf16 {od}, {vr(P + o*8, 4)}, {vr(VF + vb*8, 4)}, {od}"]
                m[3] = [f"v_mfma_f32_32x32x16_bf16 {od}, {vr(P + o*8 + 4, 4)}, {vr(VF + vb*8 + 4, 4)}, {od}"]
            if "swapqk" in VAR:
                m[0] = [f"v_mfma_f32_32x32x16_bf16 {d}, {vr(Q + o*8, 4)}, {vr(KF + kb*8, 4)}, 0"]
                m[2] = [f"v_mfma_f32_32x32x16_bf16 {d}, {vr(Q + o*8 + 4, 4)}, {vr(KF + kb*8 + 4, 4)}, {d}"]
            if "ord" in VAR: m = [m[0], m[2], m[1], m[3]]
            if "f16" in VAR: m = [[x.replace("bf16", "f16") for x in mm] for mm in m]
            if "nomfma" in VAR: m = [[], [], [], []]
            if "noqk" in VAR: m[0] = []; m[2] = []
            if "nopv" in VAR: m[1] = []; m[3] = []
            if "noexp" in VAR: e = [f"s_nop 1" for k in range(16)]
            if "movexp" in VAR: e = [f"v_sin_f32 v{s0+k}, v{s0+k}" for k in range(16)]
            for g in range(4):
                L.append(e[4*g]); L += m[g]; L += e[4*g+1:4*g+4]; L += cv[2*g:2*g+2]
        else:
            qk = [f"v_mfma_f32_16x16x32_bf16 {vr(S + o*16 + 4*t, 4)}, {vr(KF + kb*8 + (t>>1)*4, 4)}, {vr(Q + o*8 + (t&1)*4, 4)}, 0" for t in range(4)]
            pv = [f"v_mfma_f32_16x16x32_bf16 {vr(O + o*16 + 4*t, 4)}, {vr(VF + vb*8 + (t>>1)*4, 4)}, {vr(P + o*8 + (t&1)*4, 4)}, {vr(O + o*16 + 4*t, 4)}" for t in range(4)]
            mm = [qk[0], pv[0], qk[1], pv[1], qk[2], pv[2], qk[3], pv[3]] if opt == "m16" else qk
            if opt == "mix":
                od = vr(O + o*16, 16)
                mm = [qk[0], qk[1], f"v_mfma_f32_32x32x16_bf16 {od}, {vr(VF + vb*8, 4)}, {vr(P + o*8, 4)}, {od}", None, qk[2], qk[3], f"v_mfma_f32_32x32x16_bf16 {od}, {vr(VF + vb*8 + 4, 4)}, {vr(P + o*8 + 4, 4)}, {od}", None]
            for g in range(8):
                L.append(e[2*g])
                if mm[g]: L.append(mm[g])
                L.append(e[2*g+1])
                if g > 0: L.append(cv[g-1])
            L.append("s_nop 0"); L.append(cv[7])
    return "".join("    " + l + "\n" for l in L)
def pre():
    p = "    v_lshlrev_b32 v7, 4, v150\n"
    for i in range(16):
        p += f"    global_load_dwordx4 v[2:5], v7, s[6:7] offset:{(i%4)*1024}\n    s_waitcnt vmcnt(0)\n"
        for r in range(2, 6):
            p += f"    v_mul_lo_u32 v{r}, v{r}, v{r}\n    v_mul_u32_u24 v{r}, {12345+i*77}, v{r}\n    v_and_b32 v{r}, 0x80ff80ff, v{r}\n    v_or_b32 v{r}, 0x3f003f00, v{r}\n"
        p += f"    ds_write_b128 v7, v[2:5] offset:{i*1024}\n"
    for i in range(16, 64):
        p += f"    v_alignbit_b32 v{i}, v{2 + i%4}, v{2 + (i+1)%4}, {(i*5)%31}\n"
        p += f"    v_and_b32 v{i}, 0x80ff80ff, v{i}\n    v_or_b32 v{i}, 0x3e003e00, v{i}\n"
    return p
for VAR in ("base", "swappv", "swapqk", "ord", "f16", "base", "swappv", "ord"):
    kernel(f"a6_{VAR.replace(',','_')}_{len(kernels)}_kernel", body("m32"), 8, 512, vgpr=168, ninit=150, pre=pre(), lds=65536)
emit("attn6.s")
```
